```python
import torch

def _softmax(x, axis=-1):
    return torch.softmax(x, dim=axis)
def _gelu(x):
    return torch.nn.functional.gelu(x, approximate="tanh")
def _silu(x):
    return torch.nn.functional.silu(x)
def _sigmoid(x):
    return torch.sigmoid(x)
def _layernorm(x, axis=-1, eps=1e-5):
    m = x.mean(dim=axis, keepdim=True)
    v = x.var(dim=axis, keepdim=True, unbiased=False)
    return (x - m) / torch.sqrt(v + eps)
def _scatter_add(tgt, idx, src, axis=0):
    return tgt.clone().index_add_(axis, idx, src)
def _segment_sum(src, seg, n):
    out = torch.zeros((n,) + src.shape[1:], dtype=src.dtype)
    return out.index_add_(0, seg, src)
def _pad(x, pw):
    flat = tuple(v for pair in reversed(pw) for v in pair)
    return torch.nn.functional.pad(x, flat)

kernel_name = 'standalone__paged_block_table_kv_pagedattention__sampling'

def setup_inputs():

    _w = (lambda a: (lambda t: t.to(torch.bfloat16) if t.is_floating_point() else t)(torch.as_tensor(a)))
    B, Hq, Hkv, Sq, Skv, D = 8, 32, 32, 16, 2048, 128
    bs = 16
    nbps = max(1, Skv // bs)
    num_phys = B * nbps + 4
    bt = torch.randperm(num_phys)[: B * nbps].reshape(B, nbps).to(torch.int64)
    cl = (nbps * bs - (torch.arange(1, B + 1, dtype=torch.int64) * 2654435761) % max(1, nbps * bs // 2)).to(torch.int64)
    return {
        "q": _w((lambda *s: torch.randn(*s, dtype=torch.bfloat16) * 0.8)(B, Hq, Sq, D)),
        "k_cache": _w((lambda *s: torch.randn(*s, dtype=torch.bfloat16) * 0.8)(num_phys, bs, Hkv, D)),
        "v_cache": _w((lambda *s: torch.randn(*s, dtype=torch.bfloat16) * 0.05)(num_phys, bs, Hkv, D)),
        "block_table": _w(bt),
        "context_lens": _w(cl),
    }

def reference(q, k_cache, v_cache, block_table, context_lens):
    B, Hq, Sq, D = q.shape
    bs = k_cache.shape[1]
    Hkv = k_cache.shape[2]
    nbps = block_table.shape[1]
    Skv = nbps * bs
    bt = block_table.reshape(-1)
    k = (lambda x, *d: x.permute(*d))(k_cache[bt].reshape(B, Skv, Hkv, D), 0, 2, 1, 3)
    v = (lambda x, *d: x.permute(*d))(v_cache[bt].reshape(B, Skv, Hkv, D), 0, 2, 1, 3)
    g = Hq // Hkv
    qg = q.reshape(B, Hkv, g, Sq, D)
    scores = torch.einsum("bhgqd,bhkd->bhgqk", qg, k) * (D ** -0.5)
    pos = torch.arange(Skv)
    msk = pos[None, :] < context_lens[:, None]
    scores = torch.where(msk[:, None, None, None, :], scores, -1e9)
    p = _softmax(scores, axis=-1)
    out = torch.einsum("bhgqk,bhkd->bhgqd", p, v)
    return out.reshape(B, Hq, Sq, D)
```

```python
import sys, argparse, struct

NAME = "standalone__paged_block_table_kv_pagedattention__sampling"
HEADER = open("cdna_kernels/%s.s.ref" % NAME).read().split("; Override launch")[0]

KV_BYTES = 1028 * 131072
C_F = (128 ** -0.5) * 1.4426950408889634
def f2u(x): return struct.unpack("<I", struct.pack("<f", x))[0]
C_BITS = f2u(C_F)
NEG_BIG = f2u(-(2.0 ** 34))

def gen(W=8, kflags="", vflags="", nocompute=False):
    L = []
    e = L.append
    sKsrd, sVsrd, sOsrd, sQsrd, sBsrd = 8, 12, 16, 20, 24
    sC, sSelLo, sSelHi = 28, 29, 30
    sCl, sNblk, sNt, sW, sB, sH = 31, 32, 33, 34, 35, 36
    sN = 37
    sTile = 38
    sRem = 39
    sK0, sK1 = 40, 41
    sV0, sV1 = 42, 43
    sT0, sT1 = 44, 45
    vQ = 4
    vAcc = 20
    vS = 52
    vP = 60
    vVt = 64
    vKA, vVA, vKB, vVB = 96, 128, 160, 192
    vKoff = 224
    vVoff = 225
    vBt0, vBt1 = 229, 230
    vM, vL = 231, 232
    vT0, vT1, vT2, vT3 = 233, 234, 235, 236
    vTok = 237
    vAl = 238
    vLane, vG, vQi = 1, 2, 3
    NV = 240

    def vr(b, n): return "v[%d:%d]" % (b, b + n - 1)
    def sr(b, n): return "s[%d:%d]" % (b, b + n - 1)

    e("%s_kernel:" % NAME)
    e("s_cmp_ge_u32 s2, 256")
    e("s_cbranch_scc1 L_end")
    e("s_load_dwordx4 s[48:51], s[0:1], 0")
    e("s_load_dwordx4 s[52:55], s[0:1], 16")
    e("s_load_dwordx4 s[56:59], s[0:1], 32")
    e("s_lshr_b32 s%d, s2, 5" % sB)
    e("s_and_b32 s%d, s2, 31" % sH)
    e("v_and_b32 v%d, 63, v0" % vLane)
    e("v_lshrrev_b32 v%d, 6, v0" % vT0)
    e("v_lshrrev_b32 v%d, 4, v%d" % (vG, vLane))
    e("v_readfirstlane_b32 s%d, v%d" % (sW, vT0))
    e("v_and_b32 v%d, 15, v%d" % (vQi, vLane))
    e("s_mov_b32 s%d, 0x%08x" % (sC, C_BITS))
    e("s_mov_b32 s%d, 0x05040100" % sSelLo)
    e("s_mov_b32 s%d, 0x07060302" % sSelHi)
    e("s_lshl_b32 s%d, s%d, 9" % (sT0, sB))
    e("s_lshl_b32 s%d, s%d, 3" % (sT1, sW))
    e("s_add_u32 s%d, s%d, s%d" % (sT0, sT0, sT1))
    e("v_mul_u32_u24 v%d, %d, v%d" % (vT0, 8 * W, vLane))
    e("v_add_u32 v%d, s%d, v%d" % (vT0, sT0, vT0))
    e("s_lshl_b32 s%d, s2, 12" % sT1)
    e("v_lshlrev_b32 v%d, 8, v%d" % (vT1, vQi))
    e("v_lshl_add_u32 v%d, v%d, 4, v%d" % (vT1, vG, vT1))
    e("v_add_u32 v%d, s%d, v%d" % (vT1, sT1, vT1))
    e("s_lshl_b32 s%d, s%d, 2" % (sT0, sB))
    e("s_waitcnt lgkmcnt(0)")
    e("s_load_dword s%d, s[56:57], s%d" % (sCl, sT0))
    def srd(d, lo, size):
        e("s_mov_b32 s%d, s%d" % (d, lo))
        e("s_and_b32 s%d, s%d, 0xffff" % (d + 1, lo + 1))
        e("s_mov_b32 s%d, %d" % (d + 2, size))
        e("s_mov_b32 s%d, 0x20000" % (d + 3))
    srd(sBsrd, 54, 4096)
    e("buffer_load_dwordx2 v[%d:%d], v%d, %s, 0 offen" % (vT2 + 1, vT2 + 2, vT0, sr(sBsrd, 4)))
    srd(sQsrd, 48, 8 * 32 * 16 * 128 * 2)
    for s in range(4):
        e("buffer_load_dwordx4 %s, v%d, %s, 0 offen offset:%d" % (vr(vQ + 4 * s, 4), vT1, sr(sQsrd, 4), 64 * s))
    srd(sKsrd, 50, KV_BYTES)
    srd(sVsrd, 52, KV_BYTES)
    srd(sOsrd, 58, 8 * 32 * 16 * 128 * 2)
    e("s_lshl_b32 s%d, s%d, 8" % (sT0, sH))
    e("v_lshlrev_b32 v%d, 13, v%d" % (vKoff, vQi))
    e("v_lshl_add_u32 v%d, v%d, 4, v%d" % (vKoff, vG, vKoff))
    e("v_add_u32 v%d, s%d, v%d" % (vKoff, sT0, vKoff))
    e("v_lshlrev_b32 v%d, 15, v%d" % (vVoff, vG))
    e("v_lshl_add_u32 v%d, v%d, 4, v%d" % (vVoff, vQi, vVoff))
    e("v_add_u32 v%d, s%d, v%d" % (vVoff, sT0, vVoff))
    for j in range(1, 4):
        e("v_add_u32 v%d, %d, v%d" % (vVoff + j, 8192 * j, vVoff))
    for i in range(32):
        e("v_mov_b32 v%d, 0" % (vAcc + i))
    e("v_mov_b32 v%d, 0x%08x" % (vM, NEG_BIG))
    e("v_mov_b32 v%d, 0" % vL)
    e("v_mul_u32_u24 v%d, %d, v%d" % (vT0, 2 * W, vLane))
    e("s_lshl_b32 s%d, s%d, 1" % (sT0, sW))
    e("v_add_u32 v%d, s%d, v%d" % (vT0, sT0, vT0))
    e("v_add_u32 v%d, 1, v%d" % (vT1, vT0))
    e("s_waitcnt lgkmcnt(0)")
    e("s_min_i32 s%d, s%d, 2048" % (sT0, sCl))
    e("s_cmp_lt_i32 s%d, 1" % sCl)
    e("s_cselect_b32 s%d, 2048, s%d" % (sT0, sT0))
    e("s_add_u32 s%d, s%d, 15" % (sT0, sT0))
    e("s_lshr_b32 s%d, s%d, 4" % (sNblk, sT0))
    e("s_add_u32 s%d, s%d, 1" % (sT0, sNblk))
    e("s_lshr_b32 s%d, s%d, 1" % (sNt, sT0))
    e("s_min_i32 s%d, s%d, 2048" % (sCl, sCl))
    e("v_mov_b32 v%d, %d" % (vAl, KV_BYTES))
    e("v_cmp_gt_u32 vcc, s%d, v%d" % (sNblk, vT0))
    e("v_cmp_gt_u32 s[46:47], s%d, v%d" % (sNblk, vT1))
    e("s_waitcnt vmcnt(4)")
    e("v_lshlrev_b32 v%d, 17, v%d" % (vT2 + 1, vT2 + 1))
    e("v_lshlrev_b32 v%d, 17, v%d" % (vT2 + 2, vT2 + 2))
    e("v_cndmask_b32 v%d, v%d, v%d, vcc" % (vBt0, vAl, vT2 + 1))
    e("v_cndmask_b32 v%d, v%d, v%d, s[46:47]" % (vBt1, vAl, vT2 + 2))
    e("v_lshlrev_b32 v%d, 2, v%d" % (vTok, vG))
    e("s_mov_b32 s%d, s%d" % (sTile, sW))

    def kloads(vK, s0, s1):
        for beta, so in ((0, s0), (1, s1)):
            for s in range(4):
                e("buffer_load_dwordx4 %s, v%d, %s, s%d offen offset:%d %s" %
                  (vr(vK + 16 * beta + 4 * s, 4), vKoff, sr(sKsrd, 4), so, 64 * s, kflags))
    def vloads(vV, s0, s1):
        for beta, so in ((0, s0), (1, s1)):
            for j in range(4):
                e("buffer_load_dwordx4 %s, v%d, %s, s%d offen %s" %
                  (vr(vV + 16 * beta + 4 * j, 4), vVoff + j, sr(sVsrd, 4), so, vflags))

    e("v_readlane_b32 s%d, v%d, 0" % (sK0, vBt0))
    e("v_readlane_b32 s%d, v%d, 0" % (sK1, vBt1))
    e("v_readlane_b32 s%d, v%d, 1" % (sV0, vBt0))
    e("v_readlane_b32 s%d, v%d, 1" % (sV1, vBt1))
    e("s_nop 3")
    kloads(vKA, sK0, sK1)
    vloads(vVA, sK0, sK1)
    kloads(vKB, sV0, sV1)
    vloads(vVB, sV0, sV1)
    e("s_mov_b32 s%d, 2" % sN)
    e("s_cmp_ge_u32 s%d, s%d" % (sTile, sNt))
    e("s_cbranch_scc1 L_done")

    def tile(tag, vK, vV):
        e("v_readlane_b32 s%d, v%d, s%d" % (sK0, vBt0, sN))
        e("v_readlane_b32 s%d, v%d, s%d" % (sK1, vBt1, sN))
        e("s_lshl_b32 s%d, s%d, 5" % (sT0, sTile))
        e("s_sub_i32 s%d, s%d, s%d" % (sRem, sCl, sT0))
        e("s_waitcnt vmcnt(24)")
        if not nocompute:
            for s in range(4):
                for beta in range(2):
                    c = "0" if s == 0 else vr(vS + 4 * beta, 4)
                    e("v_mfma_f32_16x16x32_bf16 %s, %s, %s, %s" %
                      (vr(vS + 4 * beta, 4), vr(vK + 16 * beta + 4 * s, 4), vr(vQ + 4 * s, 4), c))
        else:
            e("s_nop 4")
        kloads(vK, sK0, sK1)
        if not nocompute:
            e("s_cmp_ge_i32 s%d, 32" % sRem)
            e("s_cbranch_scc1 L_nomask_%s" % tag)
            e("v_mov_b32 v%d, 0x%08x" % (vT1, NEG_BIG))
            for beta in range(2):
                for r in range(4):
                    e("s_sub_i32 s%d, s%d, %d" % (sT0, sRem, 16 * beta + r))
                    e("v_cmp_gt_i32 vcc, s%d, v%d" % (sT0, vTok))
                    e("s_nop 1")
                    e("v_cndmask_b32 v%d, v%d, v%d, vcc" % (vS + 4 * beta + r, vT1, vS + 4 * beta + r))
            e("L_nomask_%s:" % tag)
            e("v_max3_f32 v%d, v%d, v%d, v%d" % (vT0, vS, vS + 1, vS + 2))
            e("v_max3_f32 v%d, v%d, v%d, v%d" % (vT1, vS + 3, vS + 4, vS + 5))
            e("v_max3_f32 v%d, v%d, v%d, v%d" % (vT0, vT0, vS + 6, vS + 7))
            e("v_max3_f32 v%d, v%d, v%d, v%d" % (vT0, vT0, vT1, vM))
            e("v_mov_b32 v%d, v%d" % (vT1, vT0))
            e("s_nop 1")
            e("v_permlane16_swap_b32 v%d, v%d" % (vT0, vT1))
            e("v_max_f32 v%d, v%d, v%d" % (vT0, vT0, vT1))
            e("v_mov_b32 v%d, v%d" % (vT1, vT0))
            e("s_nop 1")
            e("v_permlane32_swap_b32 v%d, v%d" % (vT0, vT1))
            e("v_max_f32 v%d, v%d, v%d" % (vT0, vT0, vT1))
            e("v_sub_f32 v%d, v%d, v%d" % (vT1, vM, vT0))
            e("v_mul_f32 v%d, s%d, v%d" % (vT2, sC, vT0))
            e("v_mul_f32 v%d, s%d, v%d" % (vT1, sC, vT1))
            e("v_mov_b32 v%d, v%d" % (vM, vT0))
            e("v_exp_f32 v%d, v%d" % (vAl, vT1))
            for i in range(8):
                e("v_fma_f32 v%d, v%d, s%d, -v%d" % (vS + i, vS + i, sC, vT2))
            for i in range(8):
                e("v_exp_f32 v%d, v%d" % (vS + i, vS + i))
            for i in range(0, 32, 2):
                e("v_pk_mul_f32 %s, %s, %s op_sel_hi:[1,0]" % (vr(vAcc + i, 2), vr(vAcc + i, 2), vr(vAl, 2)))
            e("v_add_f32 v%d, v%d, v%d" % (vT0, vS, vS + 1))
            e("v_add_f32 v%d, v%d, v%d" % (vT1, vS + 2, vS + 3))
            e("v_add_f32 v%d, v%d, v%d" % (vT2, vS + 4, vS + 5))
            e("v_add_f32 v%d, v%d, v%d" % (vT3, vS + 6, vS + 7))
            e("v_add_f32 v%d, v%d, v%d" % (vT0, vT0, vT1))
            e("v_add_f32 v%d, v%d, v%d" % (vT2, vT2, vT3))
            e("v_add_f32 v%d, v%d, v%d" % (vT0, vT0, vT2))
            e("v_fma_f32 v%d, v%d, v%d, v%d" % (vL, vL, vAl, vT0))
            for m in range(4):
                e("v_cvt_pk_bf16_f32 v%d, v%d, v%d" % (vP + m, vS + 2 * m, vS + 2 * m + 1))
        e("s_waitcnt vmcnt(24)")
        if not nocompute:
            def perms(i):
                u = i >> 1
                sel = sSelHi if (i & 1) else sSelLo
                for m in range(4):
                    e("v_perm_b32 v%d, v%d, v%d, s%d" % (vVt + 4 * i + m, vV + 4 * (2 * m + 1) + u, vV + 4 * (2 * m) + u, sel))
            perms(0)
            for i in range(8):
                if i < 7:
                    perms(i + 1)
                else:
                    e("s_nop 1")
                e("v_mfma_f32_16x16x32_bf16 %s, %s, %s, %s" %
                  (vr(vAcc + 4 * i, 4), vr(vVt + 4 * i, 4), vr(vP, 4), vr(vAcc + 4 * i, 4)))
        vloads(vV, sK0, sK1)
        e("s_add_u32 s%d, s%d, 1" % (sN, sN))
        e("s_add_u32 s%d, s%d, %d" % (sTile, sTile, W))
        e("s_cmp_ge_u32 s%d, s%d" % (sTile, sNt))

    e(".p2align 3")
    e("L_loop:")
    tile("a", vKA, vVA)
    e("s_cbranch_scc1 L_done")
    tile("b", vKB, vVB)
    e("s_cbranch_scc0 L_loop")
    e("L_done:")
    e("s_waitcnt vmcnt(0)")
    G, S = 384, 1552
    WS = 8 * S
    MB = W * WS
    LB = MB + 16 * W * 4
    LDS = LB + 16 * W * 4
    e("v_mov_b32 v%d, v%d" % (vT1, vL))
    e("s_nop 1")
    e("v_permlane16_swap_b32 v%d, v%d" % (vL, vT1))
    e("v_add_f32 v%d, v%d, v%d" % (vL, vL, vT1))
    e("v_mov_b32 v%d, v%d" % (vT1, vL))
    e("s_nop 1")
    e("v_permlane32_swap_b32 v%d, v%d" % (vL, vT1))
    e("v_add_f32 v%d, v%d, v%d" % (vL, vL, vT1))
    e("s_lshl_b32 s%d, s%d, 2" % (sT0, sW))
    e("v_mul_u32_u24 v%d, %d, v%d" % (vT2, 4 * W, vQi))
    e("v_add_u32 v%d, s%d, v%d" % (vT3, sT0, vT2))
    e("v_add_u32 v%d, %d, v%d" % (vT3, MB, vT3))
    e("v_add_u32 v%d, %d, v%d" % (vT2, MB, vT2))
    e("ds_write_b32 v%d, v%d" % (vT3, vM))
    e("s_waitcnt lgkmcnt(0)")
    e("s_barrier")
    for k in range(W // 4):
        e("ds_read_b128 %s, v%d offset:%d" % (vr(vVt + 4 * k, 4), vT2, 16 * k))
    e("s_mul_i32 s%d, s%d, %d" % (sT0, sW, WS))
    e("v_mul_u32_u24 v%d, %d, v%d" % (vT0, G, vG))
    e("v_lshl_add_u32 v%d, v%d, 4, v%d" % (vT0, vQi, vT0))
    e("v_add_u32 v%d, s%d, v%d" % (vT0, sT0, vT0))
    e("s_waitcnt lgkmcnt(0)")
    e("v_max3_f32 v%d, v%d, v%d, v%d" % (vT1, vVt, vVt + 1, vVt + 2))
    k = 3
    while k < W:
        if k + 1 < W:
            e("v_max3_f32 v%d, v%d, v%d, v%d" % (vT1, vT1, vVt + k, vVt + k + 1)); k += 2
        else:
            e("v_max_f32 v%d, v%d, v%d" % (vT1, vT1, vVt + k)); k += 1
    e("v_sub_f32 v%d, v%d, v%d" % (vT1, vM, vT1))
    e("v_mul_f32 v%d, s%d, v%d" % (vT1, sC, vT1))
    e("v_exp_f32 v%d, v%d" % (vAl, vT1))
    e("s_nop 0")
    e("v_mul_f32 v%d, v%d, v%d" % (vL, vL, vAl))
    e("ds_write_b32 v%d, v%d offset:%d" % (vT3, vL, LB - MB))
    for r in range(4):
        for i in range(8):
            e("v_mul_f32 v%d, v%d, v%d" % (vKA + 8 * r + i, vAcc + 4 * i + r, vAl))
    for kap in range(8):
        e("ds_write_b128 v%d, %s offset:%d" % (vT0, vr(vKA + 4 * kap, 4), kap * S))
    e("s_waitcnt lgkmcnt(0)")
    e("s_barrier")
    assert W == 8
    e("s_lshl_b32 s%d, s%d, 1" % (sT0, sW))
    e("v_lshrrev_b32 v%d, 5, v%d" % (vT0, vLane))
    e("v_add_u32 v%d, s%d, v%d" % (vT0, sT0, vT0))
    e("v_and_b32 v%d, 7, v%d" % (vT1, vLane))
    e("v_bfe_u32 v%d, v%d, 3, 2" % (vT2, vLane))
    e("v_mul_u32_u24 v%d, %d, v%d" % (vT1, S, vT1))
    e("v_mul_u32_u24 v%d, %d, v%d" % (vT2, G, vT2))
    e("v_add_u32 v%d, v%d, v%d" % (vT1, vT1, vT2))
    e("v_lshl_add_u32 v%d, v%d, 4, v%d" % (vT1, vT0, vT1))
    e("v_add_u32 v%d, %d, v%d" % (vT2, 4 * WS, vT1))
    e("v_mul_u32_u24 v%d, %d, v%d" % (vT3, 4 * W, vT0))
    e("v_add_u32 v%d, %d, v%d" % (vT3, LB, vT3))
    for k in range(W // 4):
        e("ds_read_b128 %s, v%d offset:%d" % (vr(vVt + 4 * k, 4), vT3, 16 * k))
    for w in range(W):
        e("ds_read_b128 %s, v%d offset:%d" % (vr(vKA + 4 * w, 4), vT1 if w < 4 else vT2, (w & 3) * WS))
    e("s_lshl_b32 s%d, s2, 12" % sT0)
    e("v_and_b32 v%d, 31, v%d" % (vT2, vLane))
    e("v_lshlrev_b32 v%d, 3, v%d" % (vT2, vT2))
    e("v_lshl_add_u32 v%d, v%d, 8, v%d" % (vT2, vT0, vT2))
    e("s_waitcnt lgkmcnt(8)")
    for k in range(1, W):
        e("v_add_f32 v%d, v%d, v%d" % (vVt, vVt, vVt + k))
    e("v_rcp_f32 v%d, v%d" % (vAl, vVt))
    e("s_waitcnt lgkmcnt(0)")
    for w in range(1, W):
        for k in range(4):
            e("v_add_f32 v%d, v%d, v%d" % (vKA + k, vKA + k, vKA + 4 * w + k))
    for k in range(4):
        e("v_mul_f32 v%d, v%d, v%d" % (vKA + k, vKA + k, vAl))
    e("v_cvt_pk_bf16_f32 v%d, v%d, v%d" % (vP, vKA, vKA + 1))
    e("v_cvt_pk_bf16_f32 v%d, v%d, v%d" % (vP + 1, vKA + 2, vKA + 3))
    e("buffer_store_dwordx2 %s, v%d, %s, s%d offen" % (vr(vP, 2), vT2, sr(sOsrd, 4), sT0))
    e("L_end:")
    e("s_endpgm")

    body = "\n".join(("    " + x if not x.endswith(":") and not x.startswith(".") else x) for x in L)
    out = HEADER
    out += "; @launch grid=(256,1,1) block=(%d,1,1) lds=%d\n" % (64 * W, LDS)
    out += '.amdgcn_target "amdgcn-amd-amdhsa--gfx950"\n.text\n.globl %s_kernel\n.p2align 8\n.type %s_kernel,@function\n' % (NAME, NAME)
    out += body + "\n"
    out += """.section .rodata,"a"
.p2align 6
.amdhsa_kernel %s_kernel
  .amdhsa_next_free_vgpr %d
  .amdhsa_next_free_sgpr 64
  .amdhsa_accum_offset %d
  .amdhsa_group_segment_fixed_size 0
  .amdhsa_kernarg_size 64
  .amdhsa_user_sgpr_count 2
  .amdhsa_user_sgpr_kernarg_segment_ptr 1
  .amdhsa_system_sgpr_workgroup_id_x 1
  .amdhsa_float_denorm_mode_32 3
.end_amdhsa_kernel
""" % (NAME, NV, NV)
    return out

if __name__ == "__main__":
    ap = argparse.ArgumentParser()
    ap.add_argument("-o", default="cdna_kernels/%s.s" % NAME)
    ap.add_argument("--kflags", default="")
    ap.add_argument("--vflags", default="")
    ap.add_argument("--nocompute", action="store_true")
    a = ap.parse_args()
    open(a.o, "w").write(gen(8, a.kflags, a.vflags, a.nocompute))
```

```python
import sys, argparse, struct

NAME = "standalone__paged_block_table_kv_pagedattention__sampling"
HEADER = open("cdna_kernels/%s.s.ref" % NAME).read().split("; Override launch")[0]

KV_BYTES = 1028 * 131072
QO_BYTES = 8 * 32 * 16 * 128 * 2
C_F = (128 ** -0.5) * 1.4426950408889634
def f2u(x): return struct.unpack("<I", struct.pack("<f", x))[0]
C_BITS = f2u(C_F)
NEG_BIG = f2u(-(2.0 ** 34))

def gen(C=2, N=19.0, gamma=0.0, nmin=8, nmax=47, flags="nt", stamps=False, R=8, boost=0.0):
    L = []
    e = L.append
    def vr(b, n): return "v[%d:%d]" % (b, b + n - 1)
    def sr(b, n): return "s[%d:%d]" % (b, b + n - 1)
    def srd(d, lo, size):
        e("s_mov_b32 s%d, s%d" % (d, lo))
        e("s_and_b32 s%d, s%d, 0xffff" % (d + 1, lo + 1))
        e("s_mov_b32 s%d, %d" % (d + 2, size))
        e("s_mov_b32 s%d, 0x20000" % (d + 3))
    RING = R * 16384
    FB = RING
    DB = FB + 256
    PB = DB + R * 256
    PS = 8192 + 512
    LDS = PB + C * PS
    assert LDS <= 163840
    sKsrd, sVsrd, sOsrd, sQsrd, sBsrd, sWsrd = 8, 12, 16, 20, 24, 4
    sC = 28
    sCl, sNblk, sNt, sW, sB, sH = 31, 32, 33, 34, 35, 36
    sT0, sT1, sT2, sBud = 44, 45, 46, 43
    vLane, vG, vX = 1, 2, 3

    e("%s_kernel:" % NAME)
    if stamps:
        e("s_memrealtime s[88:89]")
    e("s_cmp_ge_u32 s2, 256")
    e("s_cbranch_scc1 L_end")
    e("s_load_dwordx4 s[48:51], s[0:1], 0")
    e("s_load_dwordx4 s[52:55], s[0:1], 16")
    e("s_load_dwordx4 s[56:59], s[0:1], 32")
    if stamps:
        e("s_load_dwordx2 s[60:61], s[0:1], 56")
    e("v_lshrrev_b32 v4, 6, v0")
    e("v_and_b32 v%d, 63, v0" % vLane)
    e("v_readfirstlane_b32 s%d, v4" % sW)
    e("v_lshrrev_b32 v%d, 4, v%d" % (vG, vLane))
    e("v_and_b32 v%d, 15, v%d" % (vX, vLane))
    e("s_lshr_b32 s%d, s2, 5" % sB)
    e("s_and_b32 s%d, s2, 31" % sH)
    e("s_cmp_lg_u32 s%d, 0" % sW)
    e("s_cbranch_scc1 L_consumer")

    sN, sK0, sK1, sSlot, sWin, sAcc, s2n = 37, 40, 41, 47, 30, 29, 38
    sLo, sHi, sJ = 64, 66, 68
    vOff, vBt0, vBt1, vT0, vT1, vPair, vAl, vFa, vDa, vD, vF = 4, 12, 13, 14, 15, 16, 18, 19, 20, 21, 22
    e("s_lshl_b32 s%d, s%d, 9" % (sT0, sB))
    e("v_lshlrev_b32 v%d, 3, v%d" % (vT0, vLane))
    e("v_add_u32 v%d, s%d, v%d" % (vPair, sT0, vT0))
    e("v_lshlrev_b32 v%d, 2, v%d" % (vFa, vLane))
    e("v_add_u32 v%d, %d, v%d" % (vFa, FB, vFa))
    e("v_mov_b32 v%d, 0" % vF)
    for k in range(R + 1):
        e("ds_write_b32 v%d, v%d offset:%d" % (vFa, vF, 256 * k))
    e("s_lshl_b32 s%d, s%d, 8" % (sT0, sH))
    for j in range(4):
        e("v_add_u32 v%d, %d, v%d" % (vT0, 4 * j, vG))
        e("v_and_b32 v%d, 7, v%d" % (vT1, vT0))
        e("v_lshlrev_b32 v%d, 1, v%d" % (vT1, vT1))
        e("v_xor_b32 v%d, v%d, v%d" % (vT1, vT1, vX))
        e("v_lshlrev_b32 v%d, 13, v%d" % (vT0, vT0))
        e("v_lshl_add_u32 v%d, v%d, 4, v%d" % (vT0, vT1, vT0))
        e("v_add_u32 v%d, s%d, v%d" % (vT0, sT0, vT0))
        e("v_subrev_u32 v%d, %d, v%d" % (vOff + j, 1024 * j, vT0))
    e("s_waitcnt lgkmcnt(0)")
    srd(sBsrd, 54, 4096)
    e("buffer_load_dwordx2 %s, v%d, %s, 0 offen" % (vr(vPair, 2), vPair, sr(sBsrd, 4)))
    e("s_load_dwordx8 s[80:87], s[56:57], 0")
    srd(sKsrd, 50, KV_BYTES)
    srd(sVsrd, 52, KV_BYTES)
    if stamps:
        srd(sWsrd, 60, 1 << 20)
    e("v_lshlrev_b32 v%d, 1, v%d" % (vT0, vLane))
    e("v_add_u32 v%d, 1, v%d" % (vT1, vT0))
    e("v_add_u32 v%d, %d, v%d" % (vDa, 256 + 256, vFa))
    e("s_mov_b32 m0, 0")
    e("s_getpc_b64 %s" % sr(sLo, 2))
    e("L_pc:")
    e("s_add_u32 s%d, s%d, L_var-L_pc" % (sLo, sLo))
    e("s_addc_u32 s%d, s%d, 0" % (sLo + 1, sLo + 1))
    e("s_waitcnt vmcnt(0)")
    e("v_lshlrev_b32 v%d, 17, v%d" % (vBt0, vPair))
    e("v_lshlrev_b32 v%d, 17, v%d" % (vBt1, vPair + 1))
    e("s_nop 0")
    e("v_readlane_b32 s%d, v%d, 0" % (sK0, vBt0))
    e("v_readlane_b32 s%d, v%d, 0" % (sK1, vBt1))
    e("s_nop 3")
    if stamps:
        e("s_memrealtime s[90:91]")
    def body(n):
        k = 0
        for srdn in (sKsrd, sVsrd):
            for so in (sK0, sK1):
                for j in range(4):
                    if n is not None:
                        e("s_waitcnt vmcnt(%d)" % (n - 1))
                        if (k - n + 1) % 8 == 0:
                            e("s_add_i32 s%d, s%d, %d" % (sT0, s2n, (k - n + 1) // 8))
                            e("v_mov_b32 v%d, s%d" % (vF, sT0))
                            e("ds_write_b32 v%d, v%d" % (vFa, vF))
                    e("buffer_load_dwordx4 v%d, %s, s%d offen offset:%d %s lds" % (vOff + j, sr(srdn, 4), so, 1024 * j, flags))
                    k += 1
                if k < 16:
                    e("s_add_u32 m0, m0, 4096")
                    if n is None:
                        e("s_nop 0")
    body(None)
    e("s_waitcnt lgkmcnt(0)")
    e("s_barrier")
    e("s_mov_b32 s%d, 0" % sT1)
    for b in range(8):
        x = 80 + b
        e("s_cmp_lt_i32 s%d, 1" % x)
        e("s_cselect_b32 s%d, 2048, s%d" % (x, x))
        e("s_min_i32 s%d, s%d, 2048" % (x, x))
        e("s_add_u32 s%d, s%d, 15" % (x, x))
        e("s_lshr_b32 s%d, s%d, 4" % (x, x))
        e("s_add_u32 s%d, s%d, s%d" % (sT1, sT1, x))
        e("s_cmp_eq_u32 s%d, %d" % (sB, b))
        e("s_cselect_b32 s%d, s%d, s%d" % (sNblk, x, sNblk if b else x))
    e("s_add_u32 s%d, s%d, 1" % (sT0, sNblk))
    e("s_lshr_b32 s%d, s%d, 1" % (sNt, sT0))
    e("v_cvt_f32_u32 v24, s%d" % sT1)
    e("v_cvt_f32_u32 v25, s%d" % sNblk)
    e("v_rcp_f32 v24, v24")
    e("v_mul_f32 v25, 0x%08x, v25" % f2u(N * 8.0 * 16.0 * (1 + gamma)))
    e("v_mov_b32 v26, 0x%08x" % f2u(-gamma * N * 16))
    e("v_fma_f32 v24, v24, v25, v26")
    if boost:
        e("s_and_b32 s%d, s%d, 3" % (sT0, sH))
        e("s_cmp_eq_u32 s%d, 1" % sT0)
        e("s_cselect_b32 s%d, 0x%08x, 1.0" % (sT0, f2u(1 + boost)))
        e("s_cmp_eq_u32 s%d, 31" % sH)
        e("s_cselect_b32 s%d, 0x%08x, s%d" % (sT0, f2u(1 + boost), sT0))
        e("v_mul_f32 v24, s%d, v24" % sT0)
    e("v_max_f32 v24, 0x%08x, v24" % f2u(nmin * 16.0))
    e("v_min_f32 v24, 0x%08x, v24" % f2u((nmax - 1) * 16.0))
    e("v_cvt_u32_f32 v24, v24")
    e("v_mov_b32 v%d, %d" % (vAl, KV_BYTES))
    e("v_cmp_gt_u32 vcc, s%d, v%d" % (sNblk, vT1))
    e("v_readfirstlane_b32 s%d, v24" % sWin)
    e("ds_read_b32 v%d, v%d" % (vD, vDa))
    e("s_mov_b32 s%d, 1" % sN)
    e("v_cndmask_b32 v%d, v%d, v%d, vcc" % (vBt1, vAl, vBt1))
    e("s_mov_b32 s%d, 16384" % sSlot)
    e("s_mov_b32 s%d, 8" % sAcc)
    e("s_mov_b32 s%d, 0x100000" % sBud)
    e("s_lshr_b32 s%d, s%d, 4" % (sT0, sWin))
    e("s_sub_u32 s%d, s%d, %d" % (sT0, sT0, nmin))
    e("s_lshl_b32 s%d, s%d, 8" % (sT0, sT0))
    e("s_add_u32 s%d, s%d, s%d" % (sLo, sLo, sT0))
    e("s_addc_u32 s%d, s%d, 0" % (sLo + 1, sLo + 1))
    e("s_add_u32 s%d, s%d, 256" % (sHi, sLo))
    e("s_addc_u32 s%d, s%d, 0" % (sHi + 1, sLo + 1))
    e("s_and_b32 s%d, s%d, 15" % (sWin, sWin))
    e("L_next:")
    e("s_cmp_ge_u32 s%d, s%d" % (sN, sNt))
    e("s_cbranch_scc1 L_drain")
    e("v_readlane_b32 s%d, v%d, s%d" % (sK0, vBt0, sN))
    e("v_readlane_b32 s%d, v%d, s%d" % (sK1, vBt1, sN))
    e("L_chk:")
    e("s_waitcnt lgkmcnt(0)")
    e("v_readfirstlane_b32 s%d, v%d" % (sT0, vD))
    e("s_lshl_b32 s%d, s%d, 1" % (s2n, sN))
    e("s_mov_b32 m0, s%d" % sSlot)
    e("s_add_u32 s%d, s%d, %d" % (sT0, sT0, R))
    e("s_cmp_gt_u32 s%d, s%d" % (sT0, sN))
    e("s_cbranch_scc0 L_slow")
    e("v_add_u32 v%d, %d, v%d" % (vDa, 256 - DB, vDa))
    e("v_and_b32 v%d, %d, v%d" % (vDa, R * 256 - 1, vDa))
    e("v_add_u32 v%d, %d, v%d" % (vDa, DB, vDa))
    e("s_add_u32 s%d, s%d, 16384" % (sSlot, sSlot))
    e("s_and_b32 s%d, s%d, %d" % (sSlot, sSlot, RING - 1))
    e("s_add_u32 s%d, s%d, 1" % (sN, sN))
    e("s_add_u32 s%d, s%d, s%d" % (sAcc, sAcc, sWin))
    e("s_cmp_ge_u32 s%d, 16" % sAcc)
    e("s_cselect_b64 %s, %s, %s" % (sr(sJ, 2), sr(sHi, 2), sr(sLo, 2)))
    e("s_and_b32 s%d, s%d, 15" % (sAcc, sAcc))
    e("ds_read_b32 v%d, v%d" % (vD, vDa))
    e("s_setpc_b64 %s" % sr(sJ, 2))
    e("L_slow:")
    e("ds_read_b32 v%d, v%d" % (vD, vDa))
    e("s_sub_u32 s%d, s%d, 1" % (sBud, sBud))
    e("s_cbranch_scc0 L_chk")
    e("s_endpgm")
    e("L_drain:")
    e("s_lshl_b32 s%d, s%d, 1" % (s2n, sNt))
    for j in range(5, -1, -1):
        e("s_sub_i32 s%d, s%d, %d" % (sT0, s2n, j))
        e("v_mov_b32 v%d, s%d" % (vF, sT0))
        e("s_waitcnt vmcnt(%d)" % (8 * j))
        e("ds_write_b32 v%d, v%d" % (vFa, vF))
    if stamps:
        e("s_memrealtime s[92:93]")
        e("s_getreg_b32 s70, hwreg(HW_REG_XCC_ID)")
        e("s_waitcnt lgkmcnt(0)")
        e("v_mov_b32 v4, s88"); e("v_mov_b32 v5, s90"); e("v_mov_b32 v6, s92")
        e("s_lshl_b32 s71, s%d, 8" % sNt)
        e("s_or_b32 s70, s70, s71")
        e("v_mov_b32 v7, s70")
        e("s_mul_i32 s%d, s2, %d" % (sT0, 16 * (C + 1)))
        e("v_mov_b32 v8, 0")
        e("s_mov_b64 exec, 1")
        e("buffer_store_dwordx4 v[4:7], v8, %s, s%d offen" % (sr(sWsrd, 4), sT0))
    e("s_waitcnt lgkmcnt(0)")
    e("s_barrier")
    e("s_endpgm")
    e(".p2align 8")
    e("L_var:")
    for n in range(nmin, nmax + 1):
        e(".p2align 8")
        body(n)
        e("s_branch L_next")

    sTile, sRem, sSl, sF, sTg, sCi = 37, 38, 39, 40, 41, 42
    vQ = 4
    vAcc = 20
    vS = 52
    vP = 60
    vK = 64
    vV = 96
    vKb, vVb = 128, 129
    vKa = 130
    vVa = 134
    vM, vL = 142, 143
    vT0, vT1, vT2, vT3 = 144, 145, 146, 147
    vAl = 148
    vTok, vFa, vDn, vPoll = 150, 151, 152, 153
    NV = 160
    e(".p2align 6")
    e("L_consumer:")
    e("s_sub_u32 s%d, s%d, 1" % (sCi, sW))
    e("s_lshl_b32 s%d, s2, 12" % sT1)
    e("v_lshlrev_b32 v%d, 8, v%d" % (vT1, vX))
    e("v_lshl_add_u32 v%d, v%d, 4, v%d" % (vT1, vG, vT1))
    e("s_lshl_b32 s%d, s%d, 2" % (sT0, sB))
    e("s_mov_b32 s%d, 0x%08x" % (sC, C_BITS))
    e("v_and_b32 v%d, 7, v%d" % (vT0, vX))
    e("v_lshlrev_b32 v%d, 1, v%d" % (vT0, vT0))
    e("v_xor_b32 v%d, v%d, v%d" % (vT0, vT0, vG))
    e("v_lshlrev_b32 v%d, 4, v%d" % (vT0, vT0))
    e("v_lshl_add_u32 v%d, v%d, 8, v%d" % (vKb, vX, vT0))
    e("v_lshrrev_b32 v%d, 2, v%d" % (vT0, vX))
    e("v_lshl_add_u32 v%d, v%d, 2, v%d" % (vT0, vG, vT0))
    e("v_and_b32 v%d, 7, v%d" % (vT2, vT0))
    e("v_lshlrev_b32 v%d, 5, v%d" % (vT2, vT2))
    e("v_lshl_add_u32 v%d, v%d, 8, v%d" % (vT2, vT0, vT2))
    e("v_and_b32 v%d, 3, v%d" % (vT0, vX))
    e("v_lshl_add_u32 v%d, v%d, 3, v%d" % (vVb, vT0, vT2))
    e("v_add_u32 v%d, 8192, v%d" % (vVb, vVb))
    e("v_lshlrev_b32 v%d, 2, v%d" % (vFa, vLane))
    e("v_add_u32 v%d, %d, v%d" % (vFa, FB, vFa))
    e("v_lshlrev_b32 v%d, 2, v%d" % (vTok, vG))
    for i in range(32):
        e("v_mov_b32 v%d, 0" % (vAcc + i))
    e("v_mov_b32 v%d, 0x%08x" % (vM, NEG_BIG))
    e("v_mov_b32 v%d, 0" % vL)
    e("s_waitcnt lgkmcnt(0)")
    e("s_load_dword s%d, s[56:57], s%d" % (sCl, sT0))
    srd(sQsrd, 48, QO_BYTES)
    for s in range(4):
        e("buffer_load_dwordx4 %s, v%d, %s, s%d offen offset:%d" % (vr(vQ + 4 * s, 4), vT1, sr(sQsrd, 4), sT1, 64 * s))
    srd(sOsrd, 58, QO_BYTES)
    if stamps:
        srd(sWsrd, 60, 1 << 20)
    e("s_mov_b32 s%d, s%d" % (sTile, sCi))
    e("s_lshl_b32 s%d, s%d, 14" % (sSl, sCi))
    e("s_mov_b32 s%d, 0" % sF)
    e("s_mov_b32 s%d, 0x100000" % sBud)
    e("s_waitcnt lgkmcnt(0)")
    e("s_min_i32 s%d, s%d, 2048" % (sT0, sCl))
    e("s_cmp_lt_i32 s%d, 1" % sCl)
    e("s_cselect_b32 s%d, 2048, s%d" % (sT0, sT0))
    e("s_add_u32 s%d, s%d, 31" % (sT0, sT0))
    e("s_lshr_b32 s%d, s%d, 5" % (sNt, sT0))
    e("s_min_i32 s%d, s%d, 2048" % (sCl, sCl))
    e("s_waitcnt vmcnt(0)")
    e("s_barrier")
    def poll(tag):
        e("s_cmp_ge_i32 s%d, s%d" % (sF, sTg))
        e("s_cbranch_scc1 L_ok_%s" % tag)
        e("L_poll_%s:" % tag)
        e("ds_read_b32 v%d, v%d" % (vPoll, vFa))
        e("s_sub_u32 s%d, s%d, 1" % (sBud, sBud))
        e("s_cbranch_scc1 L_end")
        e("s_waitcnt lgkmcnt(0)")
        e("v_readfirstlane_b32 s%d, v%d" % (sF, vPoll))
        e("s_nop 0")
        e("s_cmp_ge_i32 s%d, s%d" % (sF, sTg))
        e("s_cbranch_scc0 L_poll_%s" % tag)
        e("L_ok_%s:" % tag)
    e("L_ctile:")
    e("s_cmp_ge_u32 s%d, s%d" % (sTile, sNt))
    e("s_cbranch_scc1 L_cdone")
    e("s_lshl_b32 s%d, s%d, 1" % (sTg, sTile))
    e("s_add_u32 s%d, s%d, 1" % (sTg, sTg))
    e("v_add_u32 v%d, s%d, v%d" % (vKa, sSl, vKb))
    e("v_add_u32 v%d, s%d, v%d" % (vVa, sSl, vVb))
    for s in range(1, 4):
        e("v_xor_b32 v%d, %d, v%d" % (vKa + s, 64 * s, vKa))
    for i in range(1, 8):
        e("v_xor_b32 v%d, %d, v%d" % (vVa + i, 32 * i, vVa))
    e("s_lshr_b32 s%d, s%d, 6" % (sT0, sSl))
    e("v_add_u32 v%d, s%d, v%d" % (vDn, sT0, vFa))
    e("s_lshl_b32 s%d, s%d, 5" % (sT0, sTile))
    e("s_sub_i32 s%d, s%d, s%d" % (sRem, sCl, sT0))
    poll("k")
    for s in range(4):
        for beta in range(2):
            e("ds_read_b128 %s, v%d offset:%d" % (vr(vK + 16 * beta + 4 * s, 4), vKa + s, 4096 * beta))
    for s in range(4):
        for beta in range(2):
            e("s_waitcnt lgkmcnt(%d)" % (7 - 2 * s - beta))
            c = "0" if s == 0 else vr(vS + 4 * beta, 4)
            e("v_mfma_f32_16x16x32_bf16 %s, %s, %s, %s" %
              (vr(vS + 4 * beta, 4), vr(vK + 16 * beta + 4 * s, 4), vr(vQ + 4 * s, 4), c))
    e("s_add_u32 s%d, s%d, 1" % (sTg, sTg))
    e("s_add_u32 s%d, s%d, 1" % (sT2, sTile))
    e("v_mov_b32 v%d, s%d" % (vT3, sT2))
    e("s_cmp_ge_i32 s%d, 32" % sRem)
    e("s_nop 4")
    e("s_cbranch_scc1 L_nomask")
    e("v_mov_b32 v%d, 0x%08x" % (vT1, NEG_BIG))
    for beta in range(2):
        for r in range(4):
            e("s_sub_i32 s%d, s%d, %d" % (sT0, sRem, 16 * beta + r))
            e("v_cmp_gt_i32 vcc, s%d, v%d" % (sT0, vTok))
            e("s_nop 1")
            e("v_cndmask_b32 v%d, v%d, v%d, vcc" % (vS + 4 * beta + r, vT1, vS + 4 * beta + r))
    e("L_nomask:")
    e("v_max3_f32 v%d, v%d, v%d, v%d" % (vT0, vS, vS + 1, vS + 2))
    e("v_max3_f32 v%d, v%d, v%d, v%d" % (vT1, vS + 3, vS + 4, vS + 5))
    e("v_max3_f32 v%d, v%d, v%d, v%d" % (vT0, vT0, vS + 6, vS + 7))
    e("v_max3_f32 v%d, v%d, v%d, v%d" % (vT0, vT0, vT1, vM))
    e("v_mov_b32 v%d, v%d" % (vT1, vT0))
    e("s_nop 1")
    e("v_permlane16_swap_b32 v%d, v%d" % (vT0, vT1))
    e("v_max_f32 v%d, v%d, v%d" % (vT0, vT0, vT1))
    e("v_mov_b32 v%d, v%d" % (vT1, vT0))
    e("s_nop 1")
    e("v_permlane32_swap_b32 v%d, v%d" % (vT0, vT1))
    e("v_max_f32 v%d, v%d, v%d" % (vT0, vT0, vT1))
    e("v_sub_f32 v%d, v%d, v%d" % (vT1, vM, vT0))
    e("v_mul_f32 v%d, s%d, v%d" % (vT2, sC, vT0))
    e("v_mul_f32 v%d, s%d, v%d" % (vT1, sC, vT1))
    e("v_mov_b32 v%d, v%d" % (vM, vT0))
    e("v_exp_f32 v%d, v%d" % (vAl, vT1))
    for i in range(8):
        e("v_fma_f32 v%d, v%d, s%d, -v%d" % (vS + i, vS + i, sC, vT2))
    for i in range(8):
        e("v_exp_f32 v%d, v%d" % (vS + i, vS + i))
    for i in range(0, 32, 2):
        e("v_pk_mul_f32 %s, %s, %s op_sel_hi:[1,0]" % (vr(vAcc + i, 2), vr(vAcc + i, 2), vr(vAl, 2)))
    for m in range(4):
        e("v_cvt_pk_bf16_f32 v%d, v%d, v%d" % (vP + m, vS + 2 * m, vS + 2 * m + 1))
    e("v_add_f32 v%d, v%d, v%d" % (vT0, vS, vS + 1))
    e("v_add_f32 v%d, v%d, v%d" % (vT1, vS + 2, vS + 3))
    e("v_add_f32 v%d, v%d, v%d" % (vT2, vS + 4, vS + 5))
    e("v_add_f32 v%d, v%d, v%d" % (vT0, vT0, vT1))
    e("v_add_f32 v%d, v%d, v%d" % (vT1, vS + 6, vS + 7))
    e("v_add_f32 v%d, v%d, v%d" % (vT0, vT0, vT2))
    e("v_add_f32 v%d, v%d, v%d" % (vT0, vT0, vT1))
    e("v_fma_f32 v%d, v%d, v%d, v%d" % (vL, vL, vAl, vT0))
    poll("v")
    def vread(i):
        for beta in range(2):
            e("ds_read_b64_tr_b16 %s, v%d offset:%d" % (vr(vV + 4 * i + 2 * beta, 2), vVa + i, 4096 * beta))
    for i in range(4):
        vread(i)
    for i in range(8):
        if i < 4:
            vread(i + 4)
            e("s_waitcnt lgkmcnt(8)")
        else:
            e("s_waitcnt lgkmcnt(%d)" % (2 * (7 - i)))
        if i == 7:
            e("ds_write_b32 v%d, v%d offset:256" % (vDn, vT3))
        e("v_mfma_f32_16x16x32_bf16 %s, %s, %s, %s" %
          (vr(vAcc + 4 * i, 4), vr(vV + 4 * i, 4), vr(vP, 4), vr(vAcc + 4 * i, 4)))
    e("s_add_u32 s%d, s%d, %d" % (sTile, sTile, C))
    e("s_add_u32 s%d, s%d, %d" % (sSl, sSl, C * 16384))
    e("s_and_b32 s%d, s%d, %d" % (sSl, sSl, RING - 1))
    e("s_branch L_ctile")
    e("L_cdone:")
    e("v_lshlrev_b32 v%d, 4, v%d" % (vT0, vLane))
    e("v_lshlrev_b32 v%d, 3, v%d" % (vT1, vLane))
    e("s_add_u32 s%d, s%d, %d" % (sT0, sNt, C - 1))
    e("s_cmp_eq_u32 s%d, s%d" % (sTile, sT0))
    e("s_cbranch_scc1 L_last")
    e("s_mul_i32 s%d, s%d, %d" % (sT0, sCi, PS))
    e("s_add_u32 s%d, s%d, %d" % (sT0, sT0, PB))
    e("v_add_u32 v%d, s%d, v%d" % (vT0, sT0, vT0))
    e("v_add_u32 v%d, s%d, v%d" % (vT1, sT0, vT1))
    e("s_nop 2")
    e("ds_write_b64 v%d, %s offset:8192" % (vT1, vr(vM, 2)))
    for i in range(8):
        e("ds_write_b128 v%d, %s offset:%d" % (vT0, vr(vAcc + 4 * i, 4), 1024 * i))
    if stamps:
        e("s_memrealtime s[92:93]")
        e("s_getreg_b32 s70, hwreg(HW_REG_XCC_ID)")
        e("s_waitcnt lgkmcnt(0)")
        e("v_mov_b32 v4, s88"); e("v_mov_b32 v5, s88"); e("v_mov_b32 v6, s92")
        e("v_mov_b32 v7, s70")
        e("s_mul_i32 s%d, s2, %d" % (sT0, (C + 1)))
        e("s_add_u32 s%d, s%d, s%d" % (sT0, sT0, sW))
        e("s_lshl_b32 s%d, s%d, 4" % (sT0, sT0))
        e("v_mov_b32 v8, 0")
        e("s_mov_b64 exec, 1")
        e("buffer_store_dwordx4 v[4:7], v8, %s, s%d offen" % (sr(sWsrd, 4), sT0))
    e("s_waitcnt lgkmcnt(0)")
    e("s_barrier")
    e("s_endpgm")
    e("L_last:")
    oO = [vK, vV]
    oML = [vS, vS + 2]
    aO = [vKa, vKa + 1]; aM = [vKa + 2, vKa + 3]
    for k in range(1, C):
        e("s_add_u32 s%d, s%d, %d" % (sT0, sCi, k))
        e("s_cmp_ge_u32 s%d, %d" % (sT0, C))
        e("s_cselect_b32 s%d, %d, 0" % (sT1, C))
        e("s_sub_u32 s%d, s%d, s%d" % (sT0, sT0, sT1))
        e("s_mul_i32 s%d, s%d, %d" % (sT0, sT0, PS))
        e("s_add_u32 s%d, s%d, %d" % (sT0, sT0, PB))
        e("v_add_u32 v%d, s%d, v%d" % (aO[k - 1], sT0, vT0))
        e("v_add_u32 v%d, s%d, v%d" % (aM[k - 1], sT0, vT1))
    e("v_and_b32 v%d, 1, v%d" % (vT2, vG))
    e("v_lshlrev_b32 v%d, 5, v%d" % (vT2, vT2))
    e("v_lshrrev_b32 v%d, 1, v%d" % (vT3, vG))
    e("v_lshl_add_u32 v%d, v%d, 4, v%d" % (vT2, vT3, vT2))
    e("v_lshl_add_u32 v%d, v%d, 8, v%d" % (vTok, vX, vT2))
    e("s_lshl_b32 s%d, s2, 12" % sT2)
    e("s_barrier")
    for k in range(1, C):
        e("ds_read_b64 %s, v%d offset:8192" % (vr(oML[k - 1], 2), aM[k - 1]))
    nrd = 0
    for k in range(1, C):
        for i in range(8):
            if nrd == 12:
                pass
            e("ds_read_b128 %s, v%d offset:%d" % (vr(oO[k - 1] + 4 * i, 4), aO[k - 1], 1024 * i))
            nrd += 1
            if k == 1 and i == 7 and C == 3:
                e("s_waitcnt lgkmcnt(8)")
    if C == 2:
        e("s_waitcnt lgkmcnt(8)")
        e("v_max_f32 v%d, v%d, v%d" % (vT0, vM, oML[0]))
    else:
        e("v_max3_f32 v%d, v%d, v%d, v%d" % (vT0, vM, oML[0], oML[1]))
    fs = [vP, vP + 2, vVa]
    ms = [vM] + [oML[k] for k in range(C - 1)]
    ls = [vL] + [oML[k] + 1 for k in range(C - 1)]
    for k in range(C):
        e("v_sub_f32 v%d, v%d, v%d" % (fs[k], ms[k], vT0))
    for k in range(C):
        e("v_mul_f32 v%d, s%d, v%d" % (fs[k], sC, fs[k]))
    for k in range(C):
        e("v_exp_f32 v%d, v%d" % (fs[k], fs[k]))
    e("s_nop 0")
    e("v_mul_f32 v%d, v%d, v%d" % (vT0, ls[0], fs[0]))
    for k in range(1, C):
        e("v_fma_f32 v%d, v%d, v%d, v%d" % (vT0, ls[k], fs[k], vT0))
    e("v_mov_b32 v%d, v%d" % (vT1, vT0))
    e("s_nop 1")
    e("v_permlane16_swap_b32 v%d, v%d" % (vT0, vT1))
    e("v_add_f32 v%d, v%d, v%d" % (vT0, vT0, vT1))
    e("v_mov_b32 v%d, v%d" % (vT1, vT0))
    e("s_nop 1")
    e("v_permlane32_swap_b32 v%d, v%d" % (vT0, vT1))
    e("v_add_f32 v%d, v%d, v%d" % (vT0, vT0, vT1))
    e("v_rcp_f32 v%d, v%d" % (vT0, vT0))
    e("s_nop 0")
    for k in range(C):
        e("v_mul_f32 v%d, v%d, v%d" % (fs[k], fs[k], vT0))
    e("s_waitcnt lgkmcnt(0)")
    for p in range(4):
        for i in range(8 * p, 8 * p + 8, 2):
            e("v_pk_mul_f32 %s, %s, %s op_sel_hi:[1,0]" % (vr(vAcc + i, 2), vr(vAcc + i, 2), vr(fs[0], 2)))
        for k in range(1, C):
            for i in range(8 * p, 8 * p + 8, 2):
                e("v_pk_fma_f32 %s, %s, %s, %s op_sel_hi:[1,0,1]" % (vr(vAcc + i, 2), vr(oO[k - 1] + i, 2), vr(fs[k], 2), vr(vAcc + i, 2)))
        for m in range(4):
            e("v_cvt_pk_bf16_f32 v%d, v%d, v%d" % (vQ + 4 * p + m, vAcc + 8 * p + 2 * m, vAcc + 8 * p + 2 * m + 1))
        e("s_nop 1")
        e("v_permlane16_swap_b32 v%d, v%d" % (vQ + 4 * p, vQ + 4 * p + 2))
        e("v_permlane16_swap_b32 v%d, v%d" % (vQ + 4 * p + 1, vQ + 4 * p + 3))
        e("buffer_store_dwordx4 %s, v%d, %s, s%d offen offset:%d" % (vr(vQ + 4 * p, 4), vTok, sr(sOsrd, 4), sT2, 64 * p))
    if stamps:
        e("s_waitcnt vmcnt(0)")
        e("s_memrealtime s[92:93]")
        e("s_getreg_b32 s70, hwreg(HW_REG_XCC_ID)")
        e("s_waitcnt lgkmcnt(0)")
        e("v_mov_b32 v4, s88"); e("v_mov_b32 v5, s88"); e("v_mov_b32 v6, s92")
        e("v_mov_b32 v7, s70")
        e("s_mul_i32 s%d, s2, %d" % (sT0, (C + 1)))
        e("s_add_u32 s%d, s%d, s%d" % (sT0, sT0, sW))
        e("s_lshl_b32 s%d, s%d, 4" % (sT0, sT0))
        e("v_mov_b32 v8, 0")
        e("s_mov_b64 exec, 1")
        e("buffer_store_dwordx4 v[4:7], v8, %s, s%d offen" % (sr(sWsrd, 4), sT0))
    e("L_end:")
    e("s_endpgm")

    body_txt = "\n".join(("    " + x if not x.endswith(":") and not x.startswith(".") else x) for x in L)
    out = HEADER
    out += "; @launch grid=(256,1,1) block=(%d,1,1) lds=%d\n" % (64 * (C + 1), LDS)
    out += '.amdgcn_target "amdgcn-amd-amdhsa--gfx950"\n.text\n.globl %s_kernel\n.p2align 8\n.type %s_kernel,@function\n' % (NAME, NAME)
    out += body_txt + "\n"
    out += """.section .rodata,"a"
.p2align 6
.amdhsa_kernel %s_kernel
  .amdhsa_next_free_vgpr %d
  .amdhsa_next_free_sgpr 96
  .amdhsa_accum_offset %d
  .amdhsa_group_segment_fixed_size 0
  .amdhsa_kernarg_size 64
  .amdhsa_user_sgpr_count 2
  .amdhsa_user_sgpr_kernarg_segment_ptr 1
  .amdhsa_system_sgpr_workgroup_id_x 1
  .amdhsa_float_denorm_mode_32 3
.end_amdhsa_kernel
""" % (NAME, NV, NV)
    return out

if __name__ == "__main__":
    ap = argparse.ArgumentParser()
    ap.add_argument("-o", default="cdna_kernels/%s.s" % NAME)
    ap.add_argument("-C", type=int, default=2)
    ap.add_argument("-N", type=float, default=19.0)
    ap.add_argument("--gamma", type=float, default=0.0)
    ap.add_argument("--boost", type=float, default=0.0)
    ap.add_argument("--flags", default="nt")
    ap.add_argument("--stamps", action="store_true")
    a = ap.parse_args()
    open(a.o, "w").write(gen(C=a.C, N=a.N, gamma=a.gamma, flags=a.flags, stamps=a.stamps, boost=a.boost))
```

```python
import sys, argparse, struct

NAME = "standalone__paged_block_table_kv_pagedattention__sampling"
HEADER = open("cdna_kernels/%s.s.ref" % NAME).read().split("; Override launch")[0]

KV_BYTES = 1028 * 131072
QO_BYTES = 8 * 32 * 16 * 128 * 2
C_F = (128 ** -0.5) * 1.4426950408889634
def f2u(x): return struct.unpack("<I", struct.pack("<f", x))[0]
C_BITS = f2u(C_F)
NEG_BIG = f2u(-(2.0 ** 34))

def gen(C=2, N=19.0, gamma=0.0, nmin=8, nmax=47, flags="nt", stamps=False, R=8, boost=0.0, oflags="", nvgpr=None):
    L = []
    e = L.append
    def vr(b, n): return "v[%d:%d]" % (b, b + n - 1)
    def sr(b, n): return "s[%d:%d]" % (b, b + n - 1)
    def srd(d, lo, size):
        e("s_mov_b32 s%d, s%d" % (d, lo))
        e("s_and_b32 s%d, s%d, 0xffff" % (d + 1, lo + 1))
        e("s_mov_b32 s%d, %d" % (d + 2, size))
        e("s_mov_b32 s%d, 0x20000" % (d + 3))
    RING = R * 16384
    FB = RING
    DB = FB + 256
    PB = DB + R * 256
    PS = 8192 + 512
    LDS = PB + C * PS
    assert LDS <= 163840
    sKsrd, sVsrd, sOsrd, sQsrd, sBsrd, sWsrd = 8, 12, 16, 20, 24, 4
    sC = 28
    sCl, sNblk, sNt, sW, sB, sH = 31, 32, 33, 34, 35, 36
    sT0, sT1, sT2, sBud = 44, 45, 46, 43
    vLane, vG, vX = 1, 2, 3

    e("%s_kernel:" % NAME)
    if stamps:
        e("s_memrealtime s[88:89]")
    e("s_cmp_ge_u32 s2, 256")
    e("s_cbranch_scc1 L_end")
    e("s_load_dwordx4 s[48:51], s[0:1], 0")
    e("s_load_dwordx4 s[52:55], s[0:1], 16")
    e("s_load_dwordx4 s[56:59], s[0:1], 32")
    if stamps:
        e("s_load_dwordx2 s[60:61], s[0:1], 56")
    e("v_lshrrev_b32 v4, 6, v0")
    e("v_and_b32 v%d, 63, v0" % vLane)
    e("v_readfirstlane_b32 s%d, v4" % sW)
    e("v_lshrrev_b32 v%d, 4, v%d" % (vG, vLane))
    e("v_and_b32 v%d, 15, v%d" % (vX, vLane))
    e("s_lshr_b32 s%d, s2, 5" % sB)
    e("s_and_b32 s%d, s2, 31" % sH)
    e("s_cmp_lg_u32 s%d, 0" % sW)
    e("s_cbranch_scc1 L_consumer")

    sN, sK0, sK1, sSlot, sWin, sAcc, s2n = 37, 40, 41, 47, 30, 29, 38
    sLo, sHi, sJ = 64, 66, 68
    vOff, vBt0, vBt1, vT0, vT1, vPair, vAl, vFa, vDa, vD, vF = 4, 12, 13, 14, 15, 16, 18, 19, 20, 21, 22
    e("s_lshl_b32 s%d, s%d, 9" % (sT0, sB))
    e("v_lshlrev_b32 v%d, 3, v%d" % (vT0, vLane))
    e("v_add_u32 v%d, s%d, v%d" % (vPair, sT0, vT0))
    e("v_lshlrev_b32 v%d, 2, v%d" % (vFa, vLane))
    e("v_add_u32 v%d, %d, v%d" % (vFa, FB, vFa))
    e("v_mov_b32 v%d, 0" % vF)
    for k in range(R + 1):
        e("ds_write_b32 v%d, v%d offset:%d" % (vFa, vF, 256 * k))
    e("s_lshl_b32 s%d, s%d, 8" % (sT0, sH))
    for j in range(4):
        e("v_add_u32 v%d, %d, v%d" % (vT0, 4 * j, vG))
        e("v_and_b32 v%d, 7, v%d" % (vT1, vT0))
        e("v_lshlrev_b32 v%d, 1, v%d" % (vT1, vT1))
        e("v_xor_b32 v%d, v%d, v%d" % (vT1, vT1, vX))
        e("v_lshlrev_b32 v%d, 13, v%d" % (vT0, vT0))
        e("v_lshl_add_u32 v%d, v%d, 4, v%d" % (vT0, vT1, vT0))
        e("v_add_u32 v%d, s%d, v%d" % (vT0, sT0, vT0))
        e("v_subrev_u32 v%d, %d, v%d" % (vOff + j, 1024 * j, vT0))
    e("s_waitcnt lgkmcnt(0)")
    srd(sBsrd, 54, 4096)
    e("buffer_load_dwordx2 %s, v%d, %s, 0 offen" % (vr(vPair, 2), vPair, sr(sBsrd, 4)))
    e("s_load_dwordx8 s[80:87], s[56:57], 0")
    srd(sKsrd, 50, KV_BYTES)
    srd(sVsrd, 52, KV_BYTES)
    if stamps:
        srd(sWsrd, 60, 1 << 20)
    e("v_lshlrev_b32 v%d, 1, v%d" % (vT0, vLane))
    e("v_add_u32 v%d, 1, v%d" % (vT1, vT0))
    e("v_add_u32 v%d, %d, v%d" % (vDa, 256 + 256, vFa))
    e("s_mov_b32 m0, 0")
    e("s_getpc_b64 %s" % sr(sLo, 2))
    e("L_pc:")
    e("s_add_u32 s%d, s%d, L_var-L_pc" % (sLo, sLo))
    e("s_addc_u32 s%d, s%d, 0" % (sLo + 1, sLo + 1))
    e("s_waitcnt vmcnt(0)")
    e("v_lshlrev_b32 v%d, 17, v%d" % (vBt0, vPair))
    e("v_lshlrev_b32 v%d, 17, v%d" % (vBt1, vPair + 1))
    e("s_nop 0")
    e("v_readlane_b32 s%d, v%d, 0" % (sK0, vBt0))
    e("v_readlane_b32 s%d, v%d, 0" % (sK1, vBt1))
    e("s_nop 3")
    if stamps:
        e("s_memrealtime s[90:91]")
    def body(n):
        k = 0
        for srdn in (sKsrd, sVsrd):
            for so in (sK0, sK1):
                for j in range(4):
                    if n is not None:
                        e("s_waitcnt vmcnt(%d)" % (n - 1))
                        if (k - n + 1) % 8 == 0:
                            e("s_add_i32 s%d, s%d, %d" % (sT0, s2n, (k - n + 1) // 8))
                            e("v_mov_b32 v%d, s%d" % (vF, sT0))
                            e("ds_write_b32 v%d, v%d" % (vFa, vF))
                    e("buffer_load_dwordx4 v%d, %s, s%d offen offset:%d %s lds" % (vOff + j, sr(srdn, 4), so, 1024 * j, flags))
                    k += 1
                if k < 16:
                    e("s_add_u32 m0, m0, 4096")
                    if n is None:
                        e("s_nop 0")
    body(None)
    e("s_waitcnt lgkmcnt(0)")
    e("s_barrier")
    e("s_mov_b32 s%d, 0" % sT1)
    for b in range(8):
        x = 80 + b
        e("s_cmp_lt_i32 s%d, 1" % x)
        e("s_cselect_b32 s%d, 2048, s%d" % (x, x))
        e("s_min_i32 s%d, s%d, 2048" % (x, x))
        e("s_add_u32 s%d, s%d, 15" % (x, x))
        e("s_lshr_b32 s%d, s%d, 4" % (x, x))
        e("s_add_u32 s%d, s%d, s%d" % (sT1, sT1, x))
        e("s_cmp_eq_u32 s%d, %d" % (sB, b))
        e("s_cselect_b32 s%d, s%d, s%d" % (sNblk, x, sNblk if b else x))
    e("s_add_u32 s%d, s%d, 1" % (sT0, sNblk))
    e("s_lshr_b32 s%d, s%d, 1" % (sNt, sT0))
    e("v_cvt_f32_u32 v24, s%d" % sT1)
    e("v_cvt_f32_u32 v25, s%d" % sNblk)
    e("v_rcp_f32 v24, v24")
    e("v_mul_f32 v25, 0x%08x, v25" % f2u(N * 8.0 * 16.0 * (1 + gamma)))
    e("v_mov_b32 v26, 0x%08x" % f2u(-gamma * N * 16))
    e("v_fma_f32 v24, v24, v25, v26")
    if boost:
        e("s_and_b32 s%d, s%d, 3" % (sT0, sH))
        e("s_cmp_eq_u32 s%d, 1" % sT0)
        e("s_cselect_b32 s%d, 0x%08x, 1.0" % (sT0, f2u(1 + boost)))
        e("s_cmp_eq_u32 s%d, 31" % sH)
        e("s_cselect_b32 s%d, 0x%08x, s%d" % (sT0, f2u(1 + boost), sT0))
        e("v_mul_f32 v24, s%d, v24" % sT0)
    e("v_max_f32 v24, 0x%08x, v24" % f2u(nmin * 16.0))
    e("v_min_f32 v24, 0x%08x, v24" % f2u((nmax - 1) * 16.0))
    e("v_cvt_u32_f32 v24, v24")
    e("v_mov_b32 v%d, %d" % (vAl, KV_BYTES))
    e("v_cmp_gt_u32 vcc, s%d, v%d" % (sNblk, vT1))
    e("v_readfirstlane_b32 s%d, v24" % sWin)
    e("ds_read_b32 v%d, v%d" % (vD, vDa))
    e("s_mov_b32 s%d, 1" % sN)
    e("v_cndmask_b32 v%d, v%d, v%d, vcc" % (vBt1, vAl, vBt1))
    e("s_mov_b32 s%d, 16384" % sSlot)
    e("s_mov_b32 s%d, 8" % sAcc)
    e("s_mov_b32 s%d, 0x100000" % sBud)
    e("s_lshr_b32 s%d, s%d, 4" % (sT0, sWin))
    e("s_sub_u32 s%d, s%d, %d" % (sT0, sT0, nmin))
    e("s_lshl_b32 s%d, s%d, 8" % (sT0, sT0))
    e("s_add_u32 s%d, s%d, s%d" % (sLo, sLo, sT0))
    e("s_addc_u32 s%d, s%d, 0" % (sLo + 1, sLo + 1))
    e("s_add_u32 s%d, s%d, 256" % (sHi, sLo))
    e("s_addc_u32 s%d, s%d, 0" % (sHi + 1, sLo + 1))
    e("s_and_b32 s%d, s%d, 15" % (sWin, sWin))
    e("L_next:")
    e("s_cmp_ge_u32 s%d, s%d" % (sN, sNt))
    e("s_cbranch_scc1 L_drain")
    e("v_readlane_b32 s%d, v%d, s%d" % (sK0, vBt0, sN))
    e("v_readlane_b32 s%d, v%d, s%d" % (sK1, vBt1, sN))
    e("L_chk:")
    e("s_waitcnt lgkmcnt(0)")
    e("v_readfirstlane_b32 s%d, v%d" % (sT0, vD))
    e("s_lshl_b32 s%d, s%d, 1" % (s2n, sN))
    e("s_mov_b32 m0, s%d" % sSlot)
    e("s_add_u32 s%d, s%d, %d" % (sT0, sT0, R))
    e("s_cmp_gt_u32 s%d, s%d" % (sT0, sN))
    e("s_cbranch_scc0 L_slow")
    e("v_add_u32 v%d, %d, v%d" % (vDa, 256 - DB, vDa))
    e("v_and_b32 v%d, %d, v%d" % (vDa, R * 256 - 1, vDa))
    e("v_add_u32 v%d, %d, v%d" % (vDa, DB, vDa))
    e("s_add_u32 s%d, s%d, 16384" % (sSlot, sSlot))
    e("s_and_b32 s%d, s%d, %d" % (sSlot, sSlot, RING - 1))
    e("s_add_u32 s%d, s%d, 1" % (sN, sN))
    e("s_add_u32 s%d, s%d, s%d" % (sAcc, sAcc, sWin))
    e("s_cmp_ge_u32 s%d, 16" % sAcc)
    e("s_cselect_b64 %s, %s, %s" % (sr(sJ, 2), sr(sHi, 2), sr(sLo, 2)))
    e("s_and_b32 s%d, s%d, 15" % (sAcc, sAcc))
    e("ds_read_b32 v%d, v%d" % (vD, vDa))
    e("s_setpc_b64 %s" % sr(sJ, 2))
    e("L_slow:")
    e("ds_read_b32 v%d, v%d" % (vD, vDa))
    e("s_sub_u32 s%d, s%d, 1" % (sBud, sBud))
    e("s_cbranch_scc0 L_chk")
    e("s_endpgm")
    e("L_drain:")
    e("s_lshl_b32 s%d, s%d, 1" % (s2n, sNt))
    for j in range(5, -1, -1):
        e("s_sub_i32 s%d, s%d, %d" % (sT0, s2n, j))
        e("v_mov_b32 v%d, s%d" % (vF, sT0))
        e("s_waitcnt vmcnt(%d)" % (8 * j))
        e("ds_write_b32 v%d, v%d" % (vFa, vF))
    if stamps:
        e("s_memrealtime s[92:93]")
        e("s_getreg_b32 s70, hwreg(HW_REG_XCC_ID)")
        e("s_waitcnt lgkmcnt(0)")
        e("v_mov_b32 v4, s88"); e("v_mov_b32 v5, s90"); e("v_mov_b32 v6, s92")
        e("s_lshl_b32 s71, s%d, 8" % sNt)
        e("s_or_b32 s70, s70, s71")
        e("v_mov_b32 v7, s70")
        e("s_mul_i32 s%d, s2, %d" % (sT0, 16 * (C + 1)))
        e("v_mov_b32 v8, 0")
        e("s_mov_b64 exec, 1")
        e("buffer_store_dwordx4 v[4:7], v8, %s, s%d offen" % (sr(sWsrd, 4), sT0))
    e("s_waitcnt lgkmcnt(0)")
    e("s_barrier")
    e("s_endpgm")
    e(".p2align 8")
    e("L_var:")
    for n in range(nmin, nmax + 1):
        e(".p2align 8")
        body(n)
        e("s_branch L_next")

    sTile, sRem, sSl, sF, sTg, sCi = 37, 38, 39, 40, 41, 42
    vQ = 4
    vAcc = 20
    vS = 52
    vP = 60
    vK = 64
    vV = 96
    vKb, vVb = 128, 129
    vKa = 130
    vVa = 134
    vM, vL = 142, 143
    vT0, vT1, vT2, vT3 = 144, 145, 146, 147
    vAl = 148
    vTok, vFa, vDn, vPoll = 150, 151, 152, 153
    NV = 160
    e(".p2align 6")
    e("L_consumer:")
    e("s_sub_u32 s%d, s%d, 1" % (sCi, sW))
    e("s_lshl_b32 s%d, s2, 12" % sT1)
    e("v_lshlrev_b32 v%d, 8, v%d" % (vT1, vX))
    e("v_lshl_add_u32 v%d, v%d, 4, v%d" % (vT1, vG, vT1))
    e("s_lshl_b32 s%d, s%d, 2" % (sT0, sB))
    e("s_mov_b32 s%d, 0x%08x" % (sC, C_BITS))
    e("v_and_b32 v%d, 7, v%d" % (vT0, vX))
    e("v_lshlrev_b32 v%d, 1, v%d" % (vT0, vT0))
    e("v_xor_b32 v%d, v%d, v%d" % (vT0, vT0, vG))
    e("v_lshlrev_b32 v%d, 4, v%d" % (vT0, vT0))
    e("v_lshl_add_u32 v%d, v%d, 8, v%d" % (vKb, vX, vT0))
    e("v_lshrrev_b32 v%d, 2, v%d" % (vT0, vX))
    e("v_lshl_add_u32 v%d, v%d, 2, v%d" % (vT0, vG, vT0))
    e("v_and_b32 v%d, 7, v%d" % (vT2, vT0))
    e("v_lshlrev_b32 v%d, 5, v%d" % (vT2, vT2))
    e("v_lshl_add_u32 v%d, v%d, 8, v%d" % (vT2, vT0, vT2))
    e("v_and_b32 v%d, 3, v%d" % (vT0, vX))
    e("v_lshl_add_u32 v%d, v%d, 3, v%d" % (vVb, vT0, vT2))
    e("v_add_u32 v%d, 8192, v%d" % (vVb, vVb))
    e("v_lshlrev_b32 v%d, 2, v%d" % (vFa, vLane))
    e("v_add_u32 v%d, %d, v%d" % (vFa, FB, vFa))
    e("v_lshlrev_b32 v%d, 2, v%d" % (vTok, vG))
    for i in range(32):
        e("v_mov_b32 v%d, 0" % (vAcc + i))
    e("v_mov_b32 v%d, 0x%08x" % (vM, NEG_BIG))
    e("v_mov_b32 v%d, 0" % vL)
    e("s_waitcnt lgkmcnt(0)")
    e("s_load_dword s%d, s[56:57], s%d" % (sCl, sT0))
    srd(sQsrd, 48, QO_BYTES)
    for s in range(4):
        e("buffer_load_dwordx4 %s, v%d, %s, s%d offen offset:%d" % (vr(vQ + 4 * s, 4), vT1, sr(sQsrd, 4), sT1, 64 * s))
    srd(sOsrd, 58, QO_BYTES)
    if stamps:
        srd(sWsrd, 60, 1 << 20)
    e("s_mov_b32 s%d, s%d" % (sTile, sCi))
    e("s_lshl_b32 s%d, s%d, 14" % (sSl, sCi))
    e("s_mov_b32 s%d, 0" % sF)
    e("s_mov_b32 s%d, 0x100000" % sBud)
    e("s_waitcnt lgkmcnt(0)")
    e("s_min_i32 s%d, s%d, 2048" % (sT0, sCl))
    e("s_cmp_lt_i32 s%d, 1" % sCl)
    e("s_cselect_b32 s%d, 2048, s%d" % (sT0, sT0))
    e("s_add_u32 s%d, s%d, 31" % (sT0, sT0))
    e("s_lshr_b32 s%d, s%d, 5" % (sNt, sT0))
    e("s_min_i32 s%d, s%d, 2048" % (sCl, sCl))
    e("s_waitcnt vmcnt(0)")
    e("s_barrier")
    def poll(tag):
        e("s_cmp_ge_i32 s%d, s%d" % (sF, sTg))
        e("s_cbranch_scc1 L_ok_%s" % tag)
        e("L_poll_%s:" % tag)
        e("ds_read_b32 v%d, v%d" % (vPoll, vFa))
        e("s_sub_u32 s%d, s%d, 1" % (sBud, sBud))
        e("s_cbranch_scc1 L_end")
        e("s_waitcnt lgkmcnt(0)")
        e("v_readfirstlane_b32 s%d, v%d" % (sF, vPoll))
        e("s_nop 0")
        e("s_cmp_ge_i32 s%d, s%d" % (sF, sTg))
        e("s_cbranch_scc0 L_poll_%s" % tag)
        e("L_ok_%s:" % tag)
    e("L_ctile:")
    e("s_cmp_ge_u32 s%d, s%d" % (sTile, sNt))
    e("s_cbranch_scc1 L_cdone")
    e("s_lshl_b32 s%d, s%d, 1" % (sTg, sTile))
    e("s_add_u32 s%d, s%d, 1" % (sTg, sTg))
    e("v_add_u32 v%d, s%d, v%d" % (vKa, sSl, vKb))
    e("v_add_u32 v%d, s%d, v%d" % (vVa, sSl, vVb))
    for s in range(1, 4):
        e("v_xor_b32 v%d, %d, v%d" % (vKa + s, 64 * s, vKa))
    for i in range(1, 8):
        e("v_xor_b32 v%d, %d, v%d" % (vVa + i, 32 * i, vVa))
    e("s_lshr_b32 s%d, s%d, 6" % (sT0, sSl))
    e("v_add_u32 v%d, s%d, v%d" % (vDn, sT0, vFa))
    e("s_lshl_b32 s%d, s%d, 5" % (sT0, sTile))
    e("s_sub_i32 s%d, s%d, s%d" % (sRem, sCl, sT0))
    poll("k")
    for s in range(4):
        for beta in range(2):
            e("ds_read_b128 %s, v%d offset:%d" % (vr(vK + 16 * beta + 4 * s, 4), vKa + s, 4096 * beta))
    for s in range(4):
        for beta in range(2):
            e("s_waitcnt lgkmcnt(%d)" % (7 - 2 * s - beta))
            c = "0" if s == 0 else vr(vS + 4 * beta, 4)
            e("v_mfma_f32_16x16x32_bf16 %s, %s, %s, %s" %
              (vr(vS + 4 * beta, 4), vr(vK + 16 * beta + 4 * s, 4), vr(vQ + 4 * s, 4), c))
    e("s_add_u32 s%d, s%d, 1" % (sTg, sTg))
    e("s_add_u32 s%d, s%d, 1" % (sT2, sTile))
    e("v_mov_b32 v%d, s%d" % (vT3, sT2))
    e("s_cmp_ge_i32 s%d, 32" % sRem)
    e("s_nop 4")
    e("s_cbranch_scc1 L_nomask")
    e("v_mov_b32 v%d, 0x%08x" % (vT1, NEG_BIG))
    for beta in range(2):
        for r in range(4):
            e("s_sub_i32 s%d, s%d, %d" % (sT0, sRem, 16 * beta + r))
            e("v_cmp_gt_i32 vcc, s%d, v%d" % (sT0, vTok))
            e("s_nop 1")
            e("v_cndmask_b32 v%d, v%d, v%d, vcc" % (vS + 4 * beta + r, vT1, vS + 4 * beta + r))
    e("L_nomask:")
    e("v_max3_f32 v%d, v%d, v%d, v%d" % (vT0, vS, vS + 1, vS + 2))
    e("v_max3_f32 v%d, v%d, v%d, v%d" % (vT1, vS + 3, vS + 4, vS + 5))
    e("v_max3_f32 v%d, v%d, v%d, v%d" % (vT0, vT0, vS + 6, vS + 7))
    e("v_max3_f32 v%d, v%d, v%d, v%d" % (vT0, vT0, vT1, vM))
    e("v_mov_b32 v%d, v%d" % (vT1, vT0))
    e("s_nop 1")
    e("v_permlane16_swap_b32 v%d, v%d" % (vT0, vT1))
    e("v_max_f32 v%d, v%d, v%d" % (vT0, vT0, vT1))
    e("v_mov_b32 v%d, v%d" % (vT1, vT0))
    e("s_nop 1")
    e("v_permlane32_swap_b32 v%d, v%d" % (vT0, vT1))
    e("v_max_f32 v%d, v%d, v%d" % (vT0, vT0, vT1))
    e("v_sub_f32 v%d, v%d, v%d" % (vT1, vM, vT0))
    e("v_mul_f32 v%d, s%d, v%d" % (vT2, sC, vT0))
    e("v_mul_f32 v%d, s%d, v%d" % (vT1, sC, vT1))
    e("v_mov_b32 v%d, v%d" % (vM, vT0))
    e("v_exp_f32 v%d, v%d" % (vAl, vT1))
    for i in range(8):
        e("v_fma_f32 v%d, v%d, s%d, -v%d" % (vS + i, vS + i, sC, vT2))
    for i in range(8):
        e("v_exp_f32 v%d, v%d" % (vS + i, vS + i))
    for i in range(0, 32, 2):
        e("v_pk_mul_f32 %s, %s, %s op_sel_hi:[1,0]" % (vr(vAcc + i, 2), vr(vAcc + i, 2), vr(vAl, 2)))
    for m in range(4):
        e("v_cvt_pk_bf16_f32 v%d, v%d, v%d" % (vP + m, vS + 2 * m, vS + 2 * m + 1))
    e("v_add_f32 v%d, v%d, v%d" % (vT0, vS, vS + 1))
    e("v_add_f32 v%d, v%d, v%d" % (vT1, vS + 2, vS + 3))
    e("v_add_f32 v%d, v%d, v%d" % (vT2, vS + 4, vS + 5))
    e("v_add_f32 v%d, v%d, v%d" % (vT0, vT0, vT1))
    e("v_add_f32 v%d, v%d, v%d" % (vT1, vS + 6, vS + 7))
    e("v_add_f32 v%d, v%d, v%d" % (vT0, vT0, vT2))
    e("v_add_f32 v%d, v%d, v%d" % (vT0, vT0, vT1))
    e("v_fma_f32 v%d, v%d, v%d, v%d" % (vL, vL, vAl, vT0))
    poll("v")
    def vread(i):
        for beta in range(2):
            e("ds_read_b64_tr_b16 %s, v%d offset:%d" % (vr(vV + 4 * i + 2 * beta, 2), vVa + i, 4096 * beta))
    for i in range(4):
        vread(i)
    for i in range(8):
        if i < 4:
            vread(i + 4)
            e("s_waitcnt lgkmcnt(8)")
        else:
            e("s_waitcnt lgkmcnt(%d)" % (2 * (7 - i)))
        if i == 7:
            e("ds_write_b32 v%d, v%d offset:256" % (vDn, vT3))
        e("v_mfma_f32_16x16x32_bf16 %s, %s, %s, %s" %
          (vr(vAcc + 4 * i, 4), vr(vV + 4 * i, 4), vr(vP, 4), vr(vAcc + 4 * i, 4)))
    e("s_add_u32 s%d, s%d, %d" % (sTile, sTile, C))
    e("s_add_u32 s%d, s%d, %d" % (sSl, sSl, C * 16384))
    e("s_and_b32 s%d, s%d, %d" % (sSl, sSl, RING - 1))
    e("s_branch L_ctile")
    e("L_cdone:")
    e("v_lshlrev_b32 v%d, 4, v%d" % (vT0, vLane))
    e("v_lshlrev_b32 v%d, 3, v%d" % (vT1, vLane))
    e("s_add_u32 s%d, s%d, %d" % (sT0, sNt, C - 1))
    e("s_cmp_eq_u32 s%d, s%d" % (sTile, sT0))
    e("s_cbranch_scc1 L_last")
    e("s_mul_i32 s%d, s%d, %d" % (sT0, sCi, PS))
    e("s_add_u32 s%d, s%d, %d" % (sT0, sT0, PB))
    e("v_add_u32 v%d, s%d, v%d" % (vT0, sT0, vT0))
    e("v_add_u32 v%d, s%d, v%d" % (vT1, sT0, vT1))
    e("s_nop 2")
    e("ds_write_b64 v%d, %s offset:8192" % (vT1, vr(vM, 2)))
    for i in range(8):
        e("ds_write_b128 v%d, %s offset:%d" % (vT0, vr(vAcc + 4 * i, 4), 1024 * i))
    if stamps:
        e("s_memrealtime s[92:93]")
        e("s_getreg_b32 s70, hwreg(HW_REG_XCC_ID)")
        e("s_waitcnt lgkmcnt(0)")
        e("v_mov_b32 v4, s88"); e("v_mov_b32 v5, s88"); e("v_mov_b32 v6, s92")
        e("v_mov_b32 v7, s70")
        e("s_mul_i32 s%d, s2, %d" % (sT0, (C + 1)))
        e("s_add_u32 s%d, s%d, s%d" % (sT0, sT0, sW))
        e("s_lshl_b32 s%d, s%d, 4" % (sT0, sT0))
        e("v_mov_b32 v8, 0")
        e("s_mov_b64 exec, 1")
        e("buffer_store_dwordx4 v[4:7], v8, %s, s%d offen" % (sr(sWsrd, 4), sT0))
    e("s_waitcnt lgkmcnt(0)")
    e("s_barrier")
    e("s_endpgm")
    e("L_last:")
    oO = [vK, vV]
    oML = [vS, vS + 2]
    aO = [vKa, vKa + 1]; aM = [vKa + 2, vKa + 3]
    for k in range(1, C):
        e("s_add_u32 s%d, s%d, %d" % (sT0, sCi, k))
        e("s_cmp_ge_u32 s%d, %d" % (sT0, C))
        e("s_cselect_b32 s%d, %d, 0" % (sT1, C))
        e("s_sub_u32 s%d, s%d, s%d" % (sT0, sT0, sT1))
        e("s_mul_i32 s%d, s%d, %d" % (sT0, sT0, PS))
        e("s_add_u32 s%d, s%d, %d" % (sT0, sT0, PB))
        e("v_add_u32 v%d, s%d, v%d" % (aO[k - 1], sT0, vT0))
        e("v_add_u32 v%d, s%d, v%d" % (aM[k - 1], sT0, vT1))
    e("v_and_b32 v%d, 1, v%d" % (vT2, vG))
    e("v_lshlrev_b32 v%d, 5, v%d" % (vT2, vT2))
    e("v_lshrrev_b32 v%d, 1, v%d" % (vT3, vG))
    e("v_lshl_add_u32 v%d, v%d, 4, v%d" % (vT2, vT3, vT2))
    e("v_lshl_add_u32 v%d, v%d, 8, v%d" % (vTok, vX, vT2))
    e("s_lshl_b32 s%d, s2, 12" % sT2)
    e("s_barrier")
    for k in range(1, C):
        e("ds_read_b64 %s, v%d offset:8192" % (vr(oML[k - 1], 2), aM[k - 1]))
    nrd = 0
    for k in range(1, C):
        for i in range(8):
            if nrd == 12:
                pass
            e("ds_read_b128 %s, v%d offset:%d" % (vr(oO[k - 1] + 4 * i, 4), aO[k - 1], 1024 * i))
            nrd += 1
            if k == 1 and i == 7 and C == 3:
                e("s_waitcnt lgkmcnt(8)")
    if C == 2:
        e("s_waitcnt lgkmcnt(8)")
        e("v_max_f32 v%d, v%d, v%d" % (vT0, vM, oML[0]))
    else:
        e("v_max3_f32 v%d, v%d, v%d, v%d" % (vT0, vM, oML[0], oML[1]))
    fs = [vP, vP + 2, vVa]
    ms = [vM] + [oML[k] for k in range(C - 1)]
    ls = [vL] + [oML[k] + 1 for k in range(C - 1)]
    for k in range(C):
        e("v_sub_f32 v%d, v%d, v%d" % (fs[k], ms[k], vT0))
    for k in range(C):
        e("v_mul_f32 v%d, s%d, v%d" % (fs[k], sC, fs[k]))
    for k in range(C):
        e("v_exp_f32 v%d, v%d" % (fs[k], fs[k]))
    e("s_nop 0")
    e("v_mul_f32 v%d, v%d, v%d" % (vT0, ls[0], fs[0]))
    for k in range(1, C):
        e("v_fma_f32 v%d, v%d, v%d, v%d" % (vT0, ls[k], fs[k], vT0))
    e("v_mov_b32 v%d, v%d" % (vT1, vT0))
    e("s_nop 1")
    e("v_permlane16_swap_b32 v%d, v%d" % (vT0, vT1))
    e("v_add_f32 v%d, v%d, v%d" % (vT0, vT0, vT1))
    e("v_mov_b32 v%d, v%d" % (vT1, vT0))
    e("s_nop 1")
    e("v_permlane32_swap_b32 v%d, v%d" % (vT0, vT1))
    e("v_add_f32 v%d, v%d, v%d" % (vT0, vT0, vT1))
    e("v_rcp_f32 v%d, v%d" % (vT0, vT0))
    e("s_nop 0")
    for k in range(C):
        e("v_mul_f32 v%d, v%d, v%d" % (fs[k], fs[k], vT0))
    e("s_waitcnt lgkmcnt(0)")
    for p in range(4):
        for i in range(8 * p, 8 * p + 8, 2):
            e("v_pk_mul_f32 %s, %s, %s op_sel_hi:[1,0]" % (vr(vAcc + i, 2), vr(vAcc + i, 2), vr(fs[0], 2)))
        for k in range(1, C):
            for i in range(8 * p, 8 * p + 8, 2):
                e("v_pk_fma_f32 %s, %s, %s, %s op_sel_hi:[1,0,1]" % (vr(vAcc + i, 2), vr(oO[k - 1] + i, 2), vr(fs[k], 2), vr(vAcc + i, 2)))
        for m in range(4):
            e("v_cvt_pk_bf16_f32 v%d, v%d, v%d" % (vQ + 4 * p + m, vAcc + 8 * p + 2 * m, vAcc + 8 * p + 2 * m + 1))
        e("s_nop 1")
        e("v_permlane16_swap_b32 v%d, v%d" % (vQ + 4 * p, vQ + 4 * p + 2))
        e("v_permlane16_swap_b32 v%d, v%d" % (vQ + 4 * p + 1, vQ + 4 * p + 3))
        e("buffer_store_dwordx4 %s, v%d, %s, s%d offen offset:%d %s" % (vr(vQ + 4 * p, 4), vTok, sr(sOsrd, 4), sT2, 64 * p, oflags))
    if stamps:
        e("s_waitcnt vmcnt(0)")
        e("s_memrealtime s[92:93]")
        e("s_getreg_b32 s70, hwreg(HW_REG_XCC_ID)")
        e("s_waitcnt lgkmcnt(0)")
        e("v_mov_b32 v4, s88"); e("v_mov_b32 v5, s88"); e("v_mov_b32 v6, s92")
        e("v_mov_b32 v7, s70")
        e("s_mul_i32 s%d, s2, %d" % (sT0, (C + 1)))
        e("s_add_u32 s%d, s%d, s%d" % (sT0, sT0, sW))
        e("s_lshl_b32 s%d, s%d, 4" % (sT0, sT0))
        e("v_mov_b32 v8, 0")
        e("s_mov_b64 exec, 1")
        e("buffer_store_dwordx4 v[4:7], v8, %s, s%d offen" % (sr(sWsrd, 4), sT0))
    e("L_end:")
    e("s_endpgm")

    body_txt = "\n".join(("    " + x if not x.endswith(":") and not x.startswith(".") else x) for x in L)
    out = HEADER
    out += "; @launch grid=(256,1,1) block=(%d,1,1) lds=%d\n" % (64 * (C + 1), LDS)
    out += '.amdgcn_target "amdgcn-amd-amdhsa--gfx950"\n.text\n.globl %s_kernel\n.p2align 8\n.type %s_kernel,@function\n' % (NAME, NAME)
    out += body_txt + "\n"
    out += """.section .rodata,"a"
.p2align 6
.amdhsa_kernel %s_kernel
  .amdhsa_next_free_vgpr %d
  .amdhsa_next_free_sgpr 96
  .amdhsa_accum_offset %d
  .amdhsa_group_segment_fixed_size 0
  .amdhsa_kernarg_size 64
  .amdhsa_user_sgpr_count 2
  .amdhsa_user_sgpr_kernarg_segment_ptr 1
  .amdhsa_system_sgpr_workgroup_id_x 1
  .amdhsa_float_denorm_mode_32 3
.end_amdhsa_kernel
""" % (NAME, nvgpr or NV, nvgpr or NV)
    return out

if __name__ == "__main__":
    ap = argparse.ArgumentParser()
    ap.add_argument("-o", default="cdna_kernels/%s.s" % NAME)
    ap.add_argument("-C", type=int, default=2)
    ap.add_argument("-N", type=float, default=19.0)
    ap.add_argument("--gamma", type=float, default=0.0)
    ap.add_argument("--boost", type=float, default=0.0)
    ap.add_argument("--flags", default="nt")
    ap.add_argument("--stamps", action="store_true")
    ap.add_argument("--oflags", default="")
    ap.add_argument("--nmin", type=int, default=8)
    ap.add_argument("--nmax", type=int, default=47)
    ap.add_argument("-R", type=int, default=8)
    ap.add_argument("--nvgpr", type=int, default=None)
    a = ap.parse_args()
    open(a.o, "w").write(gen(C=a.C, N=a.N, gamma=a.gamma, flags=a.flags, stamps=a.stamps, boost=a.boost, oflags=a.oflags, nmin=a.nmin, nmax=a.nmax, R=a.R, nvgpr=a.nvgpr))
```

```python
import sys, argparse, struct

NAME = "standalone__paged_block_table_kv_pagedattention__sampling"
HEADER = open("cdna_kernels/%s.s.ref" % NAME).read().split("; Override launch")[0]

KV_BYTES = 1028 * 131072
QO_BYTES = 8 * 32 * 16 * 128 * 2
C_F = (128 ** -0.5) * 1.4426950408889634
def f2u(x): return struct.unpack("<I", struct.pack("<f", x))[0]
C_BITS = f2u(C_F)
NEG_BIG = f2u(-(2.0 ** 34))

def gen(N=20.0, gamma=0.0, nmin=8, nmax=47, flags="nt", stamps=False, nfmin=4, xbias=0.0, chk=8, nostore=False, wflags='sc1', n0=16, n1=None, noload=False):
    C = 2
    R = 8
    L = []
    e = L.append
    def vr(b, n): return "v[%d:%d]" % (b, b + n - 1)
    def sr(b, n): return "s[%d:%d]" % (b, b + n - 1)
    def srd(d, lo, size):
        e("s_mov_b32 s%d, s%d" % (d, lo))
        e("s_and_b32 s%d, s%d, 0xffff" % (d + 1, lo + 1))
        e("s_mov_b32 s%d, %d" % (d + 2, size))
        e("s_mov_b32 s%d, 0x20000" % (d + 3))
    RING = R * 16384
    FB = RING
    DB = FB + 256
    TB = DB + R * 256
    PB = TB + 1024
    PS = 8192 + 512
    LDS = PB + PS
    assert LDS <= 163840
    WS_SLOT = PS
    WS_STAMP = 256 * WS_SLOT
    sKsrd, sVsrd, sOsrd, sQsrd, sBsrd, sWsrd, sDsrd, sCsrd = 8, 12, 16, 20, 24, 4, 72, 76
    sC = 28
    sW, sB, sH = 34, 35, 36
    sT0, sT1, sT2, sBud = 44, 45, 46, 43
    vLane, vG, vX = 1, 2, 3

    def stamp_store(first):
        e("s_memrealtime s[92:93]")
        e("s_getreg_b32 s70, hwreg(HW_REG_XCC_ID)")
        e("s_waitcnt lgkmcnt(0)")
        e("v_mov_b32 v4, s88"); e("v_mov_b32 v5, s%d" % first); e("v_mov_b32 v6, s92")
        if first == 90:
            e("s_lshl_b32 s71, s33, 8")
            e("s_or_b32 s70, s70, s71")
        e("v_mov_b32 v7, s70")
        e("s_mul_i32 s%d, s2, 3" % sT0)
        e("s_add_u32 s%d, s%d, s%d" % (sT0, sT0, sW))
        e("s_lshl_b32 s%d, s%d, 4" % (sT0, sT0))
        e("s_add_u32 s%d, s%d, %d" % (sT0, sT0, WS_STAMP))
        e("v_mov_b32 v8, 0")
        e("s_mov_b64 exec, 1")
        e("buffer_store_dwordx4 v[4:7], v8, %s, s%d offen" % (sr(sWsrd, 4), sT0))

    e("%s_kernel:" % NAME)
    if stamps:
        e("s_memrealtime s[88:89]")
    e("s_cmp_ge_u32 s2, 256")
    e("s_cbranch_scc1 L_end")
    e("s_load_dwordx16 s[48:63], s[0:1], 0")
    e("v_lshrrev_b32 v4, 6, v0")
    e("v_and_b32 v%d, 63, v0" % vLane)
    e("v_readfirstlane_b32 s%d, v4" % sW)
    e("v_lshrrev_b32 v%d, 4, v%d" % (vG, vLane))
    e("v_and_b32 v%d, 15, v%d" % (vX, vLane))
    e("s_lshr_b32 s%d, s2, 5" % sB)
    e("s_and_b32 s%d, s2, 31" % sH)
    e("s_mov_b32 s%d, 0x100000" % sBud)
    e("s_cmp_lg_u32 s%d, 0" % sW)
    e("s_cbranch_scc1 L_consumer")

    sNt, sN, sK0, sK1, sSlot, sWin, sAcc, s2n = 33, 37, 40, 41, 47, 30, 29, 38
    sK2, sK3 = 31, 32
    sLo, sHi, sJ = 64, 66, 68
    vOff, vBt0, vBt1, vT0, vT1, vAl, vFa, vDa, vD, vF, vPar = 4, 12, 13, 14, 15, 18, 19, 20, 21, 22, 24
    e("s_lshl_b32 s%d, s%d, 9" % (sT1, sB))
    e("v_lshlrev_b32 v%d, 2, v%d" % (vFa, vLane))
    e("v_add_u32 v%d, %d, v%d" % (vFa, FB, vFa))
    e("v_mov_b32 v%d, 0" % vF)
    e("s_lshl_b32 s%d, s%d, 8" % (sT0, sH))
    for j in range(4):
        e("v_add_u32 v%d, %d, v%d" % (vT0, 4 * j, vG))
        e("v_and_b32 v%d, 7, v%d" % (vT1, vT0))
        e("v_lshlrev_b32 v%d, 1, v%d" % (vT1, vT1))
        e("v_xor_b32 v%d, v%d, v%d" % (vT1, vT1, vX))
        e("v_lshlrev_b32 v%d, 13, v%d" % (vT0, vT0))
        e("v_lshl_add_u32 v%d, v%d, 4, v%d" % (vT0, vT1, vT0))
        e("v_add_u32 v%d, s%d, v%d" % (vT0, sT0, vT0))
        e("v_subrev_u32 v%d, %d, v%d" % (vOff + j, 1024 * j, vT0))
    e("s_waitcnt lgkmcnt(0)")
    e("s_load_dwordx4 s[80:83], s[54:55], s%d" % sT1)
    srd(sKsrd, 50, KV_BYTES)
    srd(sVsrd, 52, KV_BYTES)
    if stamps:
        srd(sWsrd, 62, WS_STAMP + 65536)
    for k in range(R + 1):
        e("ds_write_b32 v%d, v%d offset:%d" % (vFa, vF, 256 * k))
    e("v_add_u32 v%d, %d, v%d" % (vDa, 256 + 512, vFa))
    e("v_lshlrev_b32 v%d, 3, v%d" % (vT0, vLane))
    e("v_add_u32 v%d, %d, v%d" % (vT0, TB, vT0))
    e("s_mov_b32 m0, 0")
    e("s_getpc_b64 %s" % sr(sLo, 2))
    e("L_pc:")
    e("s_add_u32 s%d, s%d, L_var-L_pc" % (sLo, sLo))
    e("s_addc_u32 s%d, s%d, 0" % (sLo + 1, sLo + 1))
    e("s_waitcnt lgkmcnt(0)")
    e("s_lshl_b32 s%d, s80, 17" % sK0)
    e("s_lshl_b32 s%d, s81, 17" % sK1)
    e("s_lshl_b32 s%d, s82, 17" % sK2)
    e("s_lshl_b32 s%d, s83, 17" % sK3)
    if stamps:
        e("s_memrealtime s[90:91]")
    def body(n, k0=sK0, k1=sK1, last_m0=False, wonly=None, base=0):
        k = 0
        for srdn in (sKsrd, sVsrd):
            for so in (k0, k1):
                for j in range(4):
                    if wonly is not None and base + k >= wonly:
                        e("s_waitcnt vmcnt(%d)" % (wonly - 1))
                    if n is not None:
                        e("s_waitcnt vmcnt(%d)" % (n - 1))
                        if (k - n + 1) % 8 == 0:
                            e("s_add_i32 s%d, s%d, %d" % (sT0, s2n, (k - n + 1) // 8))
                            e("v_mov_b32 v%d, s%d" % (vF, sT0))
                            e("ds_write_b32 v%d, v%d" % (vFa, vF))
                    e("buffer_load_dwordx4 v%d, %s, s%d offen offset:%d %s lds" % (vOff + j, sr(srdn, 4), so, 1024 * j, flags))
                    k += 1
                if k < 16 or last_m0:
                    e("s_add_u32 m0, m0, 4096")
                    if n is None:
                        e("s_nop 0")
    body(None, sK0, sK1, True, wonly=n1, base=0)
    body(None, sK2, sK3, wonly=n1, base=16)
    e("s_barrier")
    e("ds_read_b64 %s, v%d" % (vr(vBt0, 2), vT0))
    e("ds_read_b64 %s, v%d offset:512" % (vr(vPar, 2), vT0))
    e("ds_read_b32 v%d, v%d" % (vD, vDa))
    e("s_mov_b32 s%d, 2" % sN)
    e("s_mov_b32 s%d, 32768" % sSlot)
    e("s_mov_b32 s%d, 8" % sAcc)
    e("s_waitcnt lgkmcnt(0)")
    e("v_readfirstlane_b32 s%d, v%d" % (sWin, vPar + 1))
    e("v_readfirstlane_b32 s%d, v%d" % (sNt, vPar))
    e("s_nop 0")
    e("s_max_u32 s%d, s%d, %d" % (sWin, sWin, nmin * 16))
    e("s_min_u32 s%d, s%d, %d" % (sWin, sWin, (nmax - 1) * 16))
    e("s_lshr_b32 s%d, s%d, 4" % (sT0, sWin))
    e("s_sub_u32 s%d, s%d, %d" % (sT0, sT0, nmin))
    e("s_lshl_b32 s%d, s%d, 8" % (sT0, sT0))
    e("s_add_u32 s%d, s%d, s%d" % (sLo, sLo, sT0))
    e("s_addc_u32 s%d, s%d, 0" % (sLo + 1, sLo + 1))
    e("s_add_u32 s%d, s%d, 256" % (sHi, sLo))
    e("s_addc_u32 s%d, s%d, 0" % (sHi + 1, sLo + 1))
    e("s_and_b32 s%d, s%d, 15" % (sWin, sWin))
    e("s_min_u32 s%d, s%d, 64" % (sNt, sNt))
    e("L_next:")
    e("s_cmp_ge_u32 s%d, s%d" % (sN, sNt))
    e("s_cbranch_scc1 L_drain")
    e("v_readlane_b32 s%d, v%d, s%d" % (sK0, vBt0, sN))
    e("v_readlane_b32 s%d, v%d, s%d" % (sK1, vBt1, sN))
    e("L_chk:")
    e("s_waitcnt lgkmcnt(0)")
    e("v_readfirstlane_b32 s%d, v%d" % (sT0, vD))
    e("s_lshl_b32 s%d, s%d, 1" % (s2n, sN))
    e("s_mov_b32 m0, s%d" % sSlot)
    e("s_add_u32 s%d, s%d, %d" % (sT0, sT0, R))
    e("s_cmp_gt_u32 s%d, s%d" % (sT0, sN))
    e("s_cbranch_scc0 L_slow")
    e("v_add_u32 v%d, %d, v%d" % (vDa, 256 - DB, vDa))
    e("v_and_b32 v%d, %d, v%d" % (vDa, R * 256 - 1, vDa))
    e("v_add_u32 v%d, %d, v%d" % (vDa, DB, vDa))
    e("s_add_u32 s%d, s%d, 16384" % (sSlot, sSlot))
    e("s_and_b32 s%d, s%d, %d" % (sSlot, sSlot, RING - 1))
    e("s_add_u32 s%d, s%d, 1" % (sN, sN))
    e("s_add_u32 s%d, s%d, s%d" % (sAcc, sAcc, sWin))
    e("s_cmp_ge_u32 s%d, 16" % sAcc)
    e("s_cselect_b64 %s, %s, %s" % (sr(sJ, 2), sr(sHi, 2), sr(sLo, 2)))
    e("s_and_b32 s%d, s%d, 15" % (sAcc, sAcc))
    e("ds_read_b32 v%d, v%d" % (vD, vDa))
    e("s_setpc_b64 %s" % sr(sJ, 2))
    e("L_slow:")
    e("ds_read_b32 v%d, v%d" % (vD, vDa))
    e("s_sub_u32 s%d, s%d, 1" % (sBud, sBud))
    e("s_cbranch_scc0 L_chk")
    e("s_endpgm")
    e("L_drain:")
    e("s_lshl_b32 s%d, s%d, 1" % (s2n, sN))
    for j in range(5, -1, -1):
        e("s_sub_i32 s%d, s%d, %d" % (sT0, s2n, j))
        e("v_mov_b32 v%d, s%d" % (vF, sT0))
        e("s_waitcnt vmcnt(%d)" % (8 * j))
        e("ds_write_b32 v%d, v%d" % (vFa, vF))
    if stamps:
        stamp_store(90)
    e("s_waitcnt lgkmcnt(0)")
    e("s_barrier")
    e("s_endpgm")
    e(".p2align 8")
    e("L_var:")
    for n in range(nmin, nmax + 1):
        e(".p2align 8")
        body(n)
        e("s_branch L_next")

    sP, sRem, sSl, sF, sTg, sCi = 37, 38, 39, 40, 41, 42
    sNp, sPsw, sRemA, sRemB, sStage, sPchk, sPrev, sWoff, sFoff, sFsh = 33, 64, 65, 66, 67, 68, 69, 80, 81, 82
    sNtO, sNtP, sClO, sClP, sNbO, sNbP, sBp, sNf, sNtD, sNfs = 83, 84, 85, 86, 87, 29, 30, 31, 32, 47
    vQ = 4
    vAcc = 20
    vS = 52
    vP = 60
    vK = 64
    vV = 96
    vKb, vVb = 128, 129
    vKa = 130
    vVa = 134
    vM, vL = 142, 143
    vT0, vT1, vT2, vT3 = 144, 145, 146, 147
    vAl = 148
    vTok, vFa, vDn, vPoll = 150, 151, 152, 153
    vQo = 154
    vL16, vL8 = 156, 157
    vFl = 158
    vQ2 = 160
    vFO = 176
    vFM = 208
    NV = 216
    e(".p2align 6")
    e("L_consumer:")
    e("s_sub_u32 s%d, s%d, 1" % (sCi, sW))
    vA, vBi, vClA, vClB, vNtA, vNbB, vKeyA, vKeyB, vRk, vNbA = vK, vK + 1, vK + 2, vK + 3, vK + 4, vK + 5, vK + 6, vK + 7, vK + 8, vK + 10
    e("v_lshrrev_b32 v%d, 3, v%d" % (vA, vLane))
    e("v_and_b32 v%d, 7, v%d" % (vBi, vLane))
    e("v_lshlrev_b32 v%d, 2, v%d" % (vT0, vA))
    e("v_lshlrev_b32 v%d, 2, v%d" % (vT1, vBi))
    e("v_lshlrev_b32 v%d, 8, v%d" % (vQo, vX))
    e("v_lshl_add_u32 v%d, v%d, 4, v%d" % (vQo, vG, vQo))
    e("s_lshl_b32 s%d, s2, 12" % sT1)
    e("s_mov_b32 s%d, 0x%08x" % (sC, C_BITS))
    e("s_waitcnt lgkmcnt(0)")
    srd(sCsrd, 56, 32)
    e("buffer_load_dword v%d, v%d, %s, 0 offen" % (vClA, vT0, sr(sCsrd, 4)))
    e("buffer_load_dword v%d, v%d, %s, 0 offen" % (vClB, vT1, sr(sCsrd, 4)))
    srd(sQsrd, 48, QO_BYTES)
    for s in range(4):
        e("buffer_load_dwordx4 %s, v%d, %s, s%d offen offset:%d" % (vr(vQ2 + 4 * s, 4), vQo, sr(sQsrd, 4), sT1, 64 * s))
    srd(sBsrd, 54, 4096)
    srd(sOsrd, 58, QO_BYTES)
    srd(sWsrd, 62, WS_STAMP + (65536 if stamps else 0))
    srd(sDsrd, 60, 256)
    e("v_and_b32 v%d, 7, v%d" % (vT0, vX))
    e("v_lshlrev_b32 v%d, 1, v%d" % (vT0, vT0))
    e("v_xor_b32 v%d, v%d, v%d" % (vT0, vT0, vG))
    e("v_lshlrev_b32 v%d, 4, v%d" % (vT0, vT0))
    e("v_lshl_add_u32 v%d, v%d, 8, v%d" % (vKb, vX, vT0))
    e("v_lshrrev_b32 v%d, 2, v%d" % (vT0, vX))
    e("v_lshl_add_u32 v%d, v%d, 2, v%d" % (vT0, vG, vT0))
    e("v_and_b32 v%d, 7, v%d" % (vT2, vT0))
    e("v_lshlrev_b32 v%d, 5, v%d" % (vT2, vT2))
    e("v_lshl_add_u32 v%d, v%d, 8, v%d" % (vT2, vT0, vT2))
    e("v_and_b32 v%d, 3, v%d" % (vT0, vX))
    e("v_lshl_add_u32 v%d, v%d, 3, v%d" % (vVb, vT0, vT2))
    e("v_add_u32 v%d, 8192, v%d" % (vVb, vVb))
    e("v_lshlrev_b32 v%d, 2, v%d" % (vFa, vLane))
    e("v_add_u32 v%d, %d, v%d" % (vFa, FB, vFa))
    e("v_lshlrev_b32 v%d, 2, v%d" % (vTok, vG))
    e("v_lshlrev_b32 v%d, 4, v%d" % (vL16, vLane))
    e("v_lshlrev_b32 v%d, 3, v%d" % (vL8, vLane))
    e("v_mov_b32 v%d, 2048" % vT3)
    e("v_sub_u32 v%d, 7, v%d" % (vKeyA, vA))
    e("v_sub_u32 v%d, 7, v%d" % (vKeyB, vBi))
    e("v_and_b32 v%d, 56, v%d" % (vT2, vLane))
    e("s_lshl_b32 s%d, s%d, 3" % (sT0, sB))
    e("s_waitcnt vmcnt(4)")
    e("v_cmp_gt_i32 vcc, 1, v%d" % vClA)
    e("v_cmp_gt_i32 s[70:71], 1, v%d" % vClB)
    e("v_min_i32 v%d, v%d, v%d" % (vClA, vClA, vT3))
    e("v_min_i32 v%d, v%d, v%d" % (vClB, vClB, vT3))
    e("v_cndmask_b32 v%d, v%d, v%d, vcc" % (vT0, vClA, vT3))
    e("v_cndmask_b32 v%d, v%d, v%d, s[70:71]" % (vT1, vClB, vT3))
    e("v_add_u32 v%d, 15, v%d" % (vT0, vT0))
    e("v_add_u32 v%d, 15, v%d" % (vT1, vT1))
    e("v_lshrrev_b32 v%d, 4, v%d" % (vNbA, vT0))
    e("v_lshrrev_b32 v%d, 4, v%d" % (vNbB, vT1))
    e("v_add_u32 v%d, 1, v%d" % (vT0, vNbA))
    e("v_add_u32 v%d, 1, v%d" % (vT1, vNbB))
    e("v_lshrrev_b32 v%d, 1, v%d" % (vNtA, vT0))
    e("v_lshrrev_b32 v%d, 1, v%d" % (vT1, vT1))
    e("v_lshl_add_u32 v%d, v%d, 3, v%d" % (vKeyA, vNtA, vKeyA))
    e("v_lshl_add_u32 v%d, v%d, 3, v%d" % (vKeyB, vT1, vKeyB))
    e("v_cmp_gt_u32 s[70:71], v%d, v%d" % (vKeyB, vKeyA))
    e("v_readlane_b32 s%d, v%d, s%d" % (sNtO, vNtA, sT0))
    e("v_readlane_b32 s%d, v%d, s%d" % (sClO, vClA, sT0))
    e("v_lshrrev_b64 %s, v%d, s[70:71]" % (vr(vRk, 2), vT2))
    e("v_readlane_b32 s%d, v%d, s%d" % (sNbO, vNbA, sT0))
    e("v_and_b32 v%d, 0xff, v%d" % (vRk, vRk))
    e("v_bcnt_u32_b32 v%d, v%d, 0" % (vRk, vRk))
    e("s_nop 0")
    e("v_readlane_b32 s%d, v%d, s%d" % (sT1, vRk, sT0))
    e("s_nop 1")
    e("s_sub_u32 s%d, 7, s%d" % (sT2, sT1))
    e("v_cmp_eq_u32 s[70:71], s%d, v%d" % (sT2, vRk))
    e("s_nop 1")
    e("s_ff1_i32_b64 s%d, s[70:71]" % sT2)
    e("s_lshr_b32 s%d, s%d, 3" % (sBp, sT2))
    e("s_and_b32 s%d, s%d, 7" % (sBp, sBp))
    e("v_readlane_b32 s%d, v%d, s%d" % (sNtP, vNtA, sT2))
    e("v_readlane_b32 s%d, v%d, s%d" % (sClP, vClA, sT2))
    e("v_readlane_b32 s%d, v%d, s%d" % (sNbP, vNbA, sT2))
    e("s_nop 1")
    e("s_cmp_lt_u32 s%d, 4" % sT1)
    e("s_cselect_b32 s%d, s%d, s%d" % (sNtD, sNtO, sNtP))
    e("s_cselect_b32 s%d, s%d, s%d" % (sT0, sNtP, sNtO))
    e("s_sub_i32 s%d, s%d, s%d" % (sNf, sNtD, sT0))
    e("s_ashr_i32 s%d, s%d, 1" % (sNf, sNf))
    e("s_sub_i32 s%d, s%d, 2" % (sT0, sT0))
    e("s_min_i32 s%d, s%d, s%d" % (sNf, sNf, sT0))
    e("s_cmp_lt_i32 s%d, %d" % (sNf, nfmin))
    e("s_cselect_b32 s%d, 0, s%d" % (sNf, sNf))
    e("s_cmp_lt_u32 s%d, 4" % sT1)
    e("s_cselect_b32 s%d, 0, s%d" % (sNfs, sNf))
    e("s_cselect_b32 s%d, s%d, 0" % (sT0, sNf))
    e("s_cselect_b32 s%d, 0, 4" % sStage)
    e("s_cselect_b32 s%d, s%d, s%d" % (sT2, sB, sBp))
    e("s_sub_u32 s%d, s%d, s%d" % (sNp, sNtO, sT0))
    e("s_add_u32 s%d, s%d, s%d" % (sNp, sNp, sNfs))
    e("s_lshl_b32 s%d, s%d, 1" % (sPsw, sNfs))
    e("s_add_u32 s%d, s%d, 2" % (sPsw, sPsw))
    e("s_lshl_b32 s%d, s%d, 1" % (sPchk, sNf))
    e("s_add_u32 s%d, s%d, %d" % (sPchk, sPchk, chk))
    e("s_lshl_b32 s%d, s%d, 5" % (sT2, sT2))
    e("s_add_u32 s%d, s%d, s%d" % (sT2, sT2, sH))
    e("s_mul_i32 s%d, s%d, %d" % (sWoff, sT2, WS_SLOT))
    e("s_and_b32 s%d, s%d, 0xfc" % (sFoff, sT2))
    e("s_and_b32 s%d, s%d, 3" % (sFsh, sT2))
    e("s_lshl_b32 s%d, s%d, 3" % (sFsh, sFsh))
    e("s_mul_i32 s%d, s%d, s%d" % (sT2, sNf, sCi))
    e("s_cmp_eq_u32 s%d, 0" % sT2)
    e("s_cselect_b32 s%d, 3, s%d" % (sStage, sStage))
    e("s_cmp_lg_u32 s%d, 0" % sCi)
    e("s_cbranch_scc1 L_notab")
    vPp, vTo, vTf, vRow, vNbx, vE = vK, vK + 1, vK + 2, vK + 3, vK + 4, vK + 12
    e("v_subrev_u32 v%d, 2, v%d" % (vPp, vLane))
    e("s_lshl_b32 s%d, s%d, 1" % (sT2, sNfs))
    e("v_cmp_gt_u32 vcc, s%d, v%d" % (sT2, vPp))
    e("v_subrev_u32 v%d, s%d, v%d" % (vTo, sNfs, vLane))
    e("v_min_u32 v%d, 1, v%d" % (vT0, vLane))
    e("v_max_i32 v%d, v%d, v%d" % (vTo, vTo, vT0))
    e("v_add_u32 v%d, 1, v%d" % (vT0, vLane))
    e("v_lshrrev_b32 v%d, 1, v%d" % (vT0, vT0))
    e("v_cndmask_b32 v%d, v%d, v%d, vcc" % (vTo, vTo, vT0))
    e("s_mov_b32 s70, 0x55555555")
    e("s_mov_b32 s71, 0x55555555")
    e("s_and_b64 vcc, vcc, s[70:71]")
    e("s_sub_u32 s%d, s%d, s%d" % (sT2, sNtD, sNf))
    e("v_lshrrev_b32 v%d, 1, v%d" % (vTf, vPp))
    e("v_add_u32 v%d, s%d, v%d" % (vTf, sT2, vTf))
    e("v_cndmask_b32 v%d, v%d, v%d, vcc" % (vTo, vTo, vTf))
    e("v_mov_b32 v%d, s%d" % (vT0, sB))
    e("v_mov_b32 v%d, s%d" % (vT1, sBp))
    e("v_cndmask_b32 v%d, v%d, v%d, vcc" % (vRow, vT0, vT1))
    e("v_lshlrev_b32 v%d, 9, v%d" % (vRow, vRow))
    e("v_lshl_add_u32 v%d, v%d, 3, v%d" % (vRow, vTo, vRow))
    e("buffer_load_dwordx2 %s, v%d, %s, 0 offen" % (vr(vE, 2), vRow, sr(sBsrd, 4)))
    e("v_mov_b32 v%d, s%d" % (vT0, sNbO))
    e("v_mov_b32 v%d, s%d" % (vT1, sNbP))
    e("v_cndmask_b32 v%d, v%d, v%d, vcc" % (vNbx, vT0, vT1))
    e("v_lshl_add_u32 v%d, v%d, 1, 1" % (vTo, vTo))
    e("v_cmp_gt_u32 vcc, v%d, v%d" % (vNbx, vTo))
    e("v_readlane_b32 s%d, v%d, 0" % (sT2, vNbB))
    for b in range(1, 8):
        e("v_readlane_b32 s70, v%d, %d" % (vNbB, b))
        e("s_nop 0")
        e("s_add_u32 s%d, s%d, s70" % (sT2, sT2))
    e("s_sub_u32 s70, s%d, s%d" % (sNtD, sNf))
    e("s_lshl_b32 s70, s70, 1")
    e("s_cmp_lt_u32 s%d, 4" % sT1)
    e("s_cselect_b32 s71, s%d, s%d" % (sNbO, sNbP))
    e("s_sub_u32 s70, s71, s70")
    e("s_cmp_eq_u32 s%d, 0" % sNf)
    e("s_cselect_b32 s70, 0, s70")
    e("s_sub_u32 s71, 0, s70")
    e("s_cmp_lt_u32 s%d, 4" % sT1)
    e("s_cselect_b32 s70, s71, s70")
    e("s_add_u32 s70, s70, s%d" % sNbO)
    e("v_cvt_f32_u32 v%d, s%d" % (vT0, sT2))
    e("v_cvt_f32_u32 v%d, s70" % vT1)
    e("v_rcp_f32 v%d, v%d" % (vT0, vT0))
    e("v_mul_f32 v%d, 0x%08x, v%d" % (vT1, f2u(N * 8.0 * 16.0 * (1 + gamma)), vT1))
    e("v_mov_b32 v%d, 0x%08x" % (vT2, f2u(-gamma * N * 16)))
    e("v_fma_f32 v%d, v%d, v%d, v%d" % (vT0, vT0, vT1, vT2))
    if xbias:
        e("s_getreg_b32 s70, hwreg(HW_REG_XCC_ID, 0, 1)")
        e("s_cmp_eq_u32 s70, 0")
        e("s_cselect_b32 s70, 0x%08x, s%d" % (f2u(1 + xbias), sC))
        e("s_cselect_b32 s70, s70, 0x%08x" % f2u(1 - xbias))
        e("v_mul_f32 v%d, s70, v%d" % (vT0, vT0))
    e("v_max_f32 v%d, 0, v%d" % (vT0, vT0))
    e("v_cvt_u32_f32 v%d, v%d" % (vT1, vT0))
    e("v_mov_b32 v%d, s%d" % (vT0, sNp))
    e("v_add_u32 v%d, %d, v%d" % (vT2, TB, vL8))
    e("v_mov_b32 v%d, %d" % (vT3, KV_BYTES))
    e("ds_write_b64 v%d, %s offset:512" % (vT2, vr(vT0, 2)))
    e("s_waitcnt vmcnt(0)")
    e("v_lshlrev_b32 v%d, 17, v%d" % (vE, vE))
    e("v_lshlrev_b32 v%d, 17, v%d" % (vE + 1, vE + 1))
    e("v_cndmask_b32 v%d, v%d, v%d, vcc" % (vE + 1, vT3, vE + 1))
    e("ds_write_b64 v%d, %s" % (vT2, vr(vE, 2)))
    e("s_waitcnt lgkmcnt(0)")
    e("L_notab:")
    e("s_barrier")
    e("s_cmp_eq_u32 s%d, 4" % sStage)
    e("s_cselect_b32 s%d, s%d, s%d" % (sT0, sBp, sB))
    e("s_lshl_b32 s%d, s%d, 5" % (sT0, sT0))
    e("s_add_u32 s%d, s%d, s%d" % (sT0, sT0, sH))
    e("s_lshl_b32 s%d, s%d, 12" % (sT0, sT0))
    for s in range(4):
        e("buffer_load_dwordx4 %s, v%d, %s, s%d offen offset:%d" % (vr(vQ + 4 * s, 4), vQo, sr(sQsrd, 4), sT0, 64 * s))
    e("s_sub_u32 s%d, s%d, s%d" % (sT0, sNtD, sNf))
    e("s_sub_u32 s%d, s%d, 1" % (sT0, sT0))
    e("s_lshl_b32 s%d, s%d, 5" % (sT0, sT0))
    e("s_sub_i32 s%d, s%d, s%d" % (sRemA, sClP, sT0))
    e("s_cmp_eq_u32 s%d, 0" % sCi)
    e("s_cselect_b32 s%d, s%d, s%d" % (sRemA, sClO, sRemA))
    e("s_lshl_b32 s%d, s%d, 5" % (sT0, sNfs))
    e("s_add_i32 s%d, s%d, s%d" % (sRemB, sClO, sT0))
    e("s_lshl_b32 s%d, s%d, 1" % (sP, sCi))
    e("s_mov_b32 s%d, -1" % sPrev)
    e("s_mov_b32 s%d, 0" % sF)
    for i in range(32):
        e("v_mov_b32 v%d, 0" % (vAcc + i))
    e("v_mov_b32 v%d, 0x%08x" % (vM, NEG_BIG))
    e("v_mov_b32 v%d, 0" % vL)
    e("s_waitcnt vmcnt(0)")
    def poll(tag):
        e("s_cmp_ge_i32 s%d, s%d" % (sF, sTg))
        e("s_cbranch_scc1 L_ok_%s" % tag)
        e("L_poll_%s:" % tag)
        e("ds_read_b32 v%d, v%d" % (vPoll, vFa))
        e("s_sub_u32 s%d, s%d, 1" % (sBud, sBud))
        e("s_cbranch_scc1 L_end")
        e("s_waitcnt lgkmcnt(0)")
        e("v_readfirstlane_b32 s%d, v%d" % (sF, vPoll))
        e("s_nop 0")
        e("s_cmp_ge_i32 s%d, s%d" % (sF, sTg))
        e("s_cbranch_scc0 L_poll_%s" % tag)
        e("L_ok_%s:" % tag)
    e("L_ctile:")
    e("s_cmp_lg_u32 s%d, 3" % sStage)
    e("s_cbranch_scc1 L_sm")
    e("L_smret:")
    e("s_cmp_ge_u32 s%d, s%d" % (sP, sNp))
    e("s_cbranch_scc1 L_cdone")
    e("s_and_b32 s%d, s%d, %d" % (sT1, sP, R - 1))
    e("s_lshl_b32 s%d, s%d, 14" % (sSl, sT1))
    e("s_lshl_b32 s%d, s%d, 1" % (sTg, sP))
    e("s_add_u32 s%d, s%d, 1" % (sTg, sTg))
    e("v_add_u32 v%d, s%d, v%d" % (vKa, sSl, vKb))
    e("v_add_u32 v%d, s%d, v%d" % (vVa, sSl, vVb))
    for s in range(1, 4):
        e("v_xor_b32 v%d, %d, v%d" % (vKa + s, 64 * s, vKa))
    for i in range(1, 8):
        e("v_xor_b32 v%d, %d, v%d" % (vVa + i, 32 * i, vVa))
    e("s_lshl_b32 s%d, s%d, 8" % (sT0, sT1))
    e("v_add_u32 v%d, s%d, v%d" % (vDn, sT0, vFa))
    e("s_add_u32 s%d, s%d, 1" % (sT2, sP))
    e("v_mov_b32 v%d, s%d" % (vT3, sT2))
    e("s_lshr_b32 s%d, s%d, 1" % (sT0, sT2))
    e("s_cmp_lt_u32 s%d, s%d" % (sP, sPsw))
    e("s_cselect_b32 s%d, s%d, s%d" % (sT0, sT0, sP))
    e("s_cselect_b32 s%d, s%d, s%d" % (sRem, sRemA, sRemB))
    e("s_lshl_b32 s%d, s%d, 5" % (sT0, sT0))
    e("s_sub_i32 s%d, s%d, s%d" % (sRem, sRem, sT0))
    poll("k")
    for s in range(4):
        for beta in range(2):
            e("ds_read_b128 %s, v%d offset:%d" % (vr(vK + 16 * beta + 4 * s, 4), vKa + s, 4096 * beta))
    for s in range(4):
        for beta in range(2):
            e("s_waitcnt lgkmcnt(%d)" % (7 - 2 * s - beta))
            c = "0" if s == 0 else vr(vS + 4 * beta, 4)
            e("v_mfma_f32_16x16x32_bf16 %s, %s, %s, %s" %
              (vr(vS + 4 * beta, 4), vr(vK + 16 * beta + 4 * s, 4), vr(vQ + 4 * s, 4), c))
    e("s_add_u32 s%d, s%d, 1" % (sTg, sTg))
    e("s_mov_b32 s%d, s%d" % (sPrev, sP))
    e("s_cmp_eq_u32 s%d, 0" % sP)
    e("s_cselect_b32 s%d, 1, 2" % sT0)
    e("s_add_u32 s%d, s%d, s%d" % (sP, sP, sT0))
    e("s_cmp_ge_i32 s%d, 32" % sRem)
    e("s_nop 1")
    e("s_cbranch_scc1 L_nomask")
    e("v_mov_b32 v%d, 0x%08x" % (vT1, NEG_BIG))
    for beta in range(2):
        for r in range(4):
            e("s_sub_i32 s%d, s%d, %d" % (sT0, sRem, 16 * beta + r))
            e("v_cmp_gt_i32 vcc, s%d, v%d" % (sT0, vTok))
            e("s_nop 1")
            e("v_cndmask_b32 v%d, v%d, v%d, vcc" % (vS + 4 * beta + r, vT1, vS + 4 * beta + r))
    e("L_nomask:")
    e("v_max3_f32 v%d, v%d, v%d, v%d" % (vT0, vS, vS + 1, vS + 2))
    e("v_max3_f32 v%d, v%d, v%d, v%d" % (vT1, vS + 3, vS + 4, vS + 5))
    e("v_max3_f32 v%d, v%d, v%d, v%d" % (vT0, vT0, vS + 6, vS + 7))
    e("v_max3_f32 v%d, v%d, v%d, v%d" % (vT0, vT0, vT1, vM))
    e("v_mov_b32 v%d, v%d" % (vT1, vT0))
    e("s_nop 1")
    e("v_permlane16_swap_b32 v%d, v%d" % (vT0, vT1))
    e("v_max_f32 v%d, v%d, v%d" % (vT0, vT0, vT1))
    e("v_mov_b32 v%d, v%d" % (vT1, vT0))
    e("s_nop 1")
    e("v_permlane32_swap_b32 v%d, v%d" % (vT0, vT1))
    e("v_max_f32 v%d, v%d, v%d" % (vT0, vT0, vT1))
    e("v_sub_f32 v%d, v%d, v%d" % (vT1, vM, vT0))
    e("v_mul_f32 v%d, s%d, v%d" % (vT2, sC, vT0))
    e("v_mul_f32 v%d, s%d, v%d" % (vT1, sC, vT1))
    e("v_mov_b32 v%d, v%d" % (vM, vT0))
    e("v_exp_f32 v%d, v%d" % (vAl, vT1))
    for i in range(8):
        e("v_fma_f32 v%d, v%d, s%d, -v%d" % (vS + i, vS + i, sC, vT2))
    for i in range(8):
        e("v_exp_f32 v%d, v%d" % (vS + i, vS + i))
    for i in range(0, 32, 2):
        e("v_pk_mul_f32 %s, %s, %s op_sel_hi:[1,0]" % (vr(vAcc + i, 2), vr(vAcc + i, 2), vr(vAl, 2)))
    for m in range(4):
        e("v_cvt_pk_bf16_f32 v%d, v%d, v%d" % (vP + m, vS + 2 * m, vS + 2 * m + 1))
    e("v_add_f32 v%d, v%d, v%d" % (vT0, vS, vS + 1))
    e("v_add_f32 v%d, v%d, v%d" % (vT1, vS + 2, vS + 3))
    e("v_add_f32 v%d, v%d, v%d" % (vT2, vS + 4, vS + 5))
    e("v_add_f32 v%d, v%d, v%d" % (vT0, vT0, vT1))
    e("v_add_f32 v%d, v%d, v%d" % (vT1, vS + 6, vS + 7))
    e("v_add_f32 v%d, v%d, v%d" % (vT0, vT0, vT2))
    e("v_add_f32 v%d, v%d, v%d" % (vT0, vT0, vT1))
    e("v_fma_f32 v%d, v%d, v%d, v%d" % (vL, vL, vAl, vT0))
    poll("v")
    def vread(i):
        for beta in range(2):
            e("ds_read_b64_tr_b16 %s, v%d offset:%d" % (vr(vV + 4 * i + 2 * beta, 2), vVa + i, 4096 * beta))
    for i in range(4):
        vread(i)
    for i in range(8):
        if i < 4:
            vread(i + 4)
            e("s_waitcnt lgkmcnt(8)")
        else:
            e("s_waitcnt lgkmcnt(%d)" % (2 * (7 - i)))
        if i == 7:
            e("ds_write_b32 v%d, v%d offset:256" % (vDn, vT3))
        e("v_mfma_f32_16x16x32_bf16 %s, %s, %s, %s" %
          (vr(vAcc + 4 * i, 4), vr(vV + 4 * i, 4), vr(vP, 4), vr(vAcc + 4 * i, 4)))
    e("s_branch L_ctile")

    def sm_ret():
        e("s_branch L_smout")
    e("L_sm:")
    e("s_cmp_eq_u32 s%d, 4" % sStage)
    e("s_cbranch_scc1 L_sm4")
    e("s_cmp_eq_u32 s%d, 0" % sStage)
    e("s_cbranch_scc1 L_sm0")
    e("s_waitcnt vmcnt(0)")
    e("s_cmp_eq_u32 s%d, 1" % sStage)
    e("s_cbranch_scc1 L_sm1")
    e("s_cmp_eq_u32 s%d, 2" % sStage)
    e("s_cbranch_scc1 L_sm2")
    e("s_lshl_b32 s%d, 1, s%d" % (sT0, sFsh))
    e("v_mov_b32 v%d, s%d" % (vT0, sT0))
    e("v_mov_b32 v%d, 0" % vT1)
    e("s_mov_b64 exec, 1")
    e("buffer_atomic_add v%d, v%d, %s, s%d offen sc1" % (vT0, vT1, sr(sDsrd, 4), sFoff))
    e("s_mov_b64 exec, -1")
    e("s_mov_b32 s%d, 3" % sStage)
    e("s_branch L_smret")
    e("L_sm4:")
    e("s_cmp_lt_u32 s%d, s%d" % (sP, sPsw))
    e("s_cbranch_scc1 L_smret")
    e("s_nop 4")
    for i in range(8):
        if not nostore:
            e("buffer_store_dwordx4 %s, v%d, %s, s%d offen offset:%d %s" % (vr(vAcc + 4 * i, 4), vL16, sr(sWsrd, 4), sWoff, 1024 * (i & 3), wflags))
        if i == 3:
            e("s_add_u32 s%d, s%d, 4096" % (sWoff, sWoff))
    e("s_add_u32 s%d, s%d, 4096" % (sWoff, sWoff))
    e("buffer_store_dwordx2 %s, v%d, %s, s%d offen sc1" % (vr(vM, 2), vL8, sr(sWsrd, 4), sWoff))
    for i in range(16):
        e("v_mov_b32 v%d, v%d" % (vQ + i, vQ2 + i))
    for i in range(32):
        e("v_mov_b32 v%d, 0" % (vAcc + i))
    e("v_mov_b32 v%d, 0x%08x" % (vM, NEG_BIG))
    e("v_mov_b32 v%d, 0" % vL)
    e("s_mov_b32 s%d, 5" % sStage)
    e("s_branch L_smout")
    e("L_sm0:")
    e("s_min_u32 s%d, s%d, s%d" % (sT0, sPchk, sNp))
    e("s_cmp_lt_u32 s%d, s%d" % (sP, sT0))
    e("s_cbranch_scc1 L_smret")
    e("L_smflag:")
    e("v_mov_b32 v%d, 0" % vT1)
    e("buffer_load_dword v%d, v%d, %s, s%d offen sc1" % (vFl, vT1, sr(sDsrd, 4), sFoff))
    e("s_mov_b32 s%d, 1" % sStage)
    e("s_sub_u32 s%d, s%d, 1" % (sBud, sBud))
    e("s_cbranch_scc1 L_end")
    e("s_branch L_smout")
    e("L_sm1:")
    e("v_readfirstlane_b32 s%d, v%d" % (sT0, vFl))
    e("s_nop 0")
    e("s_lshr_b32 s%d, s%d, s%d" % (sT0, sT0, sFsh))
    e("s_and_b32 s%d, s%d, 0xff" % (sT0, sT0))
    e("s_cbranch_scc0 L_smflag")
    for i in range(8):
        if not (nostore or noload):
            e("buffer_load_dwordx4 %s, v%d, %s, s%d offen offset:%d sc1" % (vr(vFO + 4 * i, 4), vL16, sr(sWsrd, 4), sWoff, 1024 * (i & 3)))
        if i == 3:
            e("s_add_u32 s%d, s%d, 4096" % (sWoff, sWoff))
    e("s_add_u32 s%d, s%d, 4096" % (sWoff, sWoff))
    e("buffer_load_dwordx2 %s, v%d, %s, s%d offen sc1" % (vr(vFM, 2), vL8, sr(sWsrd, 4), sWoff))
    e("s_mov_b32 s%d, 2" % sStage)
    e("s_branch L_smout")
    e("L_sm2:")
    e("v_max_f32 v%d, v%d, v%d" % (vT0, vM, vFM))
    e("v_sub_f32 v%d, v%d, v%d" % (vAl, vM, vT0))
    e("v_sub_f32 v%d, v%d, v%d" % (vT2, vFM, vT0))
    e("v_mul_f32 v%d, s%d, v%d" % (vAl, sC, vAl))
    e("v_mul_f32 v%d, s%d, v%d" % (vT2, sC, vT2))
    e("v_exp_f32 v%d, v%d" % (vAl, vAl))
    e("v_exp_f32 v%d, v%d" % (vT2, vT2))
    e("v_mov_b32 v%d, v%d" % (vM, vT0))
    e("v_mul_f32 v%d, v%d, v%d" % (vL, vL, vAl))
    e("v_fma_f32 v%d, v%d, v%d, v%d" % (vL, vFM + 1, vT2, vL))
    for i in range(0, 32, 2):
        e("v_pk_mul_f32 %s, %s, %s op_sel_hi:[1,0]" % (vr(vAcc + i, 2), vr(vAcc + i, 2), vr(vAl, 2)))
    for i in range(0, 32, 2):
        e("v_pk_fma_f32 %s, %s, %s, %s op_sel_hi:[1,0,1]" % (vr(vAcc + i, 2), vr(vFO + i, 2), vr(vT2, 2), vr(vAcc + i, 2)))
    e("s_mov_b32 s%d, 3" % sStage)
    e("s_branch L_smret")
    e("L_smout:")
    e("s_cmp_ge_u32 s%d, s%d" % (sP, sNp))
    e("s_cbranch_scc1 L_sm")
    e("s_branch L_smret")

    e("L_cdone:")
    e("s_sub_u32 s%d, s%d, 1" % (sT0, sNp))
    e("s_cmp_eq_u32 s%d, s%d" % (sPrev, sT0))
    e("v_add_u32 v%d, %d, v%d" % (vT0, PB, vL16))
    e("v_add_u32 v%d, %d, v%d" % (vT1, PB, vL8))
    e("s_cbranch_scc1 L_last")
    e("s_nop 2")
    e("ds_write_b64 v%d, %s offset:8192" % (vT1, vr(vM, 2)))
    for i in range(8):
        e("ds_write_b128 v%d, %s offset:%d" % (vT0, vr(vAcc + 4 * i, 4), 1024 * i))
    if stamps:
        stamp_store(88)
    e("s_waitcnt lgkmcnt(0)")
    e("s_barrier")
    e("s_endpgm")
    e("L_last:")
    e("v_and_b32 v%d, 1, v%d" % (vT2, vG))
    e("v_lshlrev_b32 v%d, 5, v%d" % (vT2, vT2))
    e("v_lshrrev_b32 v%d, 1, v%d" % (vT3, vG))
    e("v_lshl_add_u32 v%d, v%d, 4, v%d" % (vT2, vT3, vT2))
    e("v_lshl_add_u32 v%d, v%d, 8, v%d" % (vTok, vX, vT2))
    e("s_lshl_b32 s%d, s2, 12" % sT2)
    e("s_barrier")
    e("ds_read_b64 %s, v%d offset:8192" % (vr(vS, 2), vT1))
    for i in range(8):
        e("ds_read_b128 %s, v%d offset:%d" % (vr(vK + 4 * i, 4), vT0, 1024 * i))
    e("s_waitcnt lgkmcnt(8)")
    e("v_max_f32 v%d, v%d, v%d" % (vT0, vM, vS))
    fs = [vP, vP + 2]
    ms = [vM, vS]
    ls = [vL, vS + 1]
    for k in range(2):
        e("v_sub_f32 v%d, v%d, v%d" % (fs[k], ms[k], vT0))
    for k in range(2):
        e("v_mul_f32 v%d, s%d, v%d" % (fs[k], sC, fs[k]))
    for k in range(2):
        e("v_exp_f32 v%d, v%d" % (fs[k], fs[k]))
    e("s_nop 0")
    e("v_mul_f32 v%d, v%d, v%d" % (vT0, ls[0], fs[0]))
    e("v_fma_f32 v%d, v%d, v%d, v%d" % (vT0, ls[1], fs[1], vT0))
    e("v_mov_b32 v%d, v%d" % (vT1, vT0))
    e("s_nop 1")
    e("v_permlane16_swap_b32 v%d, v%d" % (vT0, vT1))
    e("v_add_f32 v%d, v%d, v%d" % (vT0, vT0, vT1))
    e("v_mov_b32 v%d, v%d" % (vT1, vT0))
    e("s_nop 1")
    e("v_permlane32_swap_b32 v%d, v%d" % (vT0, vT1))
    e("v_add_f32 v%d, v%d, v%d" % (vT0, vT0, vT1))
    e("v_rcp_f32 v%d, v%d" % (vT0, vT0))
    e("s_nop 0")
    for k in range(2):
        e("v_mul_f32 v%d, v%d, v%d" % (fs[k], fs[k], vT0))
    e("s_waitcnt lgkmcnt(0)")
    for p in range(4):
        for i in range(8 * p, 8 * p + 8, 2):
            e("v_pk_mul_f32 %s, %s, %s op_sel_hi:[1,0]" % (vr(vAcc + i, 2), vr(vAcc + i, 2), vr(fs[0], 2)))
        for i in range(8 * p, 8 * p + 8, 2):
            e("v_pk_fma_f32 %s, %s, %s, %s op_sel_hi:[1,0,1]" % (vr(vAcc + i, 2), vr(vK + i, 2), vr(fs[1], 2), vr(vAcc + i, 2)))
        for m in range(4):
            e("v_cvt_pk_bf16_f32 v%d, v%d, v%d" % (vQ + 4 * p + m, vAcc + 8 * p + 2 * m, vAcc + 8 * p + 2 * m + 1))
        e("s_nop 1")
        e("v_permlane16_swap_b32 v%d, v%d" % (vQ + 4 * p, vQ + 4 * p + 2))
        e("v_permlane16_swap_b32 v%d, v%d" % (vQ + 4 * p + 1, vQ + 4 * p + 3))
        e("buffer_store_dwordx4 %s, v%d, %s, s%d offen offset:%d" % (vr(vQ + 4 * p, 4), vTok, sr(sOsrd, 4), sT2, 64 * p))
    if stamps:
        e("s_waitcnt vmcnt(0)")
        stamp_store(88)
    e("L_end:")
    e("s_endpgm")

    body_txt = "\n".join(("    " + x if not x.endswith(":") and not x.startswith(".") else x) for x in L)
    out = HEADER
    out += "; @launch grid=(256,1,1) block=(192,1,1) lds=%d\n" % LDS
    out += '.amdgcn_target "amdgcn-amd-amdhsa--gfx950"\n.text\n.globl %s_kernel\n.p2align 8\n.type %s_kernel,@function\n' % (NAME, NAME)
    out += body_txt + "\n"
    out += """.section .rodata,"a"
.p2align 6
.amdhsa_kernel %s_kernel
  .amdhsa_next_free_vgpr %d
  .amdhsa_next_free_sgpr 96
  .amdhsa_accum_offset %d
  .amdhsa_group_segment_fixed_size 0
  .amdhsa_kernarg_size 64
  .amdhsa_user_sgpr_count 2
  .amdhsa_user_sgpr_kernarg_segment_ptr 1
  .amdhsa_system_sgpr_workgroup_id_x 1
  .amdhsa_float_denorm_mode_32 3
.end_amdhsa_kernel
""" % (NAME, NV, NV)
    return out

if __name__ == "__main__":
    ap = argparse.ArgumentParser()
    ap.add_argument("-o", default="cdna_kernels/%s.s" % NAME)
    ap.add_argument("-N", type=float, default=20.0)
    ap.add_argument("--gamma", type=float, default=0.0)
    ap.add_argument("--xbias", type=float, default=0.0)
    ap.add_argument("--nfmin", type=int, default=4)
    ap.add_argument("--chk", type=int, default=8)
    ap.add_argument("--flags", default="nt")
    ap.add_argument("--stamps", action="store_true")
    ap.add_argument("--nostore", action="store_true")
    ap.add_argument("--wflags", default="sc1")
    ap.add_argument("--n1", type=int, default=None)
    ap.add_argument("--noload", action="store_true")
    a = ap.parse_args()
    open(a.o, "w").write(gen(N=a.N, gamma=a.gamma, flags=a.flags, stamps=a.stamps, nfmin=a.nfmin, xbias=a.xbias, chk=a.chk, nostore=a.nostore, wflags=a.wflags, n1=a.n1, noload=a.noload))
```

```python
import sys, argparse, struct

NAME = "standalone__paged_block_table_kv_pagedattention__sampling"
HEADER = open("cdna_kernels/%s.s.ref" % NAME).read().split("; Override launch")[0]

KV_BYTES = 1028 * 131072
QO_BYTES = 8 * 32 * 16 * 128 * 2
C_F = (128 ** -0.5) * 1.4426950408889634
def f2u(x): return struct.unpack("<I", struct.pack("<f", x))[0]
C_BITS = f2u(C_F)
NEG_BIG = f2u(-(2.0 ** 34))

def gen(N=20.3, gamma=0.2, gneg=0.05, nmin=8, nmax=40, n1=18, smask=0xa2222222, lam=0.07, fmul=2.0, fmul2=1.2,
        fmul31=1.6, nfmin=12, hw=1.15, c1b=0.02, K=80.0, lag=1.0, clampw=3.0, pstart=4, pstop=5, guard=0.12, ks=0.07,
        xtab=(0.75, -0.5, 0.75, -1.75, 1.25, -0.25, 1.0, -1.5), stamps=False, trace=False, tdiag=False, cntslow=False, toff=0.0, fl8=True, gstep=0.0, xlead=True, useF=False, ki=0.0, midbar=False):
    R = 8
    L = []
    e = L.append
    def vr(b, n): return "v[%d:%d]" % (b, b + n - 1)
    def sr(b, n): return "s[%d:%d]" % (b, b + n - 1)
    def srd(d, lo, size):
        e("s_mov_b32 s%d, s%d" % (d, lo))
        e("s_and_b32 s%d, s%d, 0xffff" % (d + 1, lo + 1))
        e("s_mov_b32 s%d, %d" % (d + 2, size))
        e("s_mov_b32 s%d, 0x20000" % (d + 3))
    RING = R * 16384
    FB = RING
    DB = FB + 256
    XB = DB + R * 256
    TB = XB + 256
    SB = TB + 1024
    AB = SB + 256
    PB = AB + 256
    PS = 8192 + 512
    LDS = PB + PS
    assert LDS <= 163840
    WS_STAMP = 256 * 8704
    sKsrd, sVsrd, sOsrd, sQsrd, sBsrd, sWsrd, sCsrd, sDsrd = 8, 12, 16, 20, 24, 4, 76, 72
    sC = 28
    sW, sB, sH = 34, 35, 36
    sT0, sT1, sT2, sBud = 44, 45, 46, 43
    vLane, vG, vX = 1, 2, 3

    def stamp_store(first):
        e("s_memrealtime s[92:93]")
        e("s_getreg_b32 s70, hwreg(HW_REG_XCC_ID)")
        e("s_waitcnt lgkmcnt(0)")
        e("v_mov_b32 v4, s88"); e("v_mov_b32 v5, s%d" % first); e("v_mov_b32 v6, s92")
        if first == 90:
            e("s_lshl_b32 s71, s33, 8")
            e("s_or_b32 s70, s70, s71")
        e("v_mov_b32 v7, s70")
        e("s_mul_i32 s%d, s2, 3" % sT0)
        e("s_add_u32 s%d, s%d, s%d" % (sT0, sT0, sW))
        e("s_lshl_b32 s%d, s%d, 4" % (sT0, sT0))
        e("s_add_u32 s%d, s%d, %d" % (sT0, sT0, WS_STAMP))
        e("v_mov_b32 v8, 0")
        e("s_mov_b64 exec, 1")
        e("buffer_store_dwordx4 v[4:7], v8, %s, s%d offen" % (sr(sWsrd, 4), sT0))

    e("%s_kernel:" % NAME)
    if stamps:
        e("; L_sm: marker")
        e("s_memrealtime s[88:89]")
    e("s_cmp_ge_u32 s2, 256")
    e("s_cbranch_scc1 L_end")
    e("s_load_dwordx16 s[48:63], s[0:1], 0")
    e("v_lshrrev_b32 v4, 6, v0")
    e("v_and_b32 v%d, 63, v0" % vLane)
    e("v_readfirstlane_b32 s%d, v4" % sW)
    e("v_lshrrev_b32 v%d, 4, v%d" % (vG, vLane))
    e("v_and_b32 v%d, 15, v%d" % (vX, vLane))
    e("s_mov_b32 s3, s2")
    e("s_lshr_b32 s%d, s2, 5" % sB)
    e("s_cmp_ge_u32 s%d, 6" % sB)
    e("s_addc_u32 s%d, s2, s%d" % (sH, sB))
    e("s_and_b32 s%d, s%d, 31" % (sH, sH))
    e("s_and_b32 s2, s2, 0xe0")
    e("s_or_b32 s2, s2, s%d" % sH)
    e("s_mov_b32 s%d, 0x100000" % sBud)
    e("s_cmp_lg_u32 s%d, 0" % sW)
    e("s_cbranch_scc1 L_consumer")

    sNt, sN, sSlot, sWin, sAcc, s2n, sMb = 33, 37, 47, 30, 29, 38, 39
    sA0, sA1, sB0, sB1 = 40, 41, 31, 32
    sLo, sMask, sJ = 64, 66, 68
    vOff, vTab, vT0, vT1, vSl, vFa, vDa, vD, vF, vPar = 4, 8, 14, 15, 16, 19, 20, 21, 22, 24
    e("s_lshl_b32 s%d, s%d, 9" % (sT1, sB))
    e("v_lshlrev_b32 v%d, 2, v%d" % (vFa, vLane))
    e("v_add_u32 v%d, %d, v%d" % (vFa, FB, vFa))
    e("v_mov_b32 v%d, 0" % vF)
    if trace:
        e("v_mov_b32 v30, 0")
    e("s_lshl_b32 s%d, s%d, 8" % (sT2, sH))
    for j in range(4):
        e("v_add_u32 v%d, %d, v%d" % (vT0, 4 * j, vG))
        e("v_and_b32 v%d, 7, v%d" % (vT1, vT0))
        e("v_lshlrev_b32 v%d, 1, v%d" % (vT1, vT1))
        e("v_xor_b32 v%d, v%d, v%d" % (vT1, vT1, vX))
        e("v_lshlrev_b32 v%d, 13, v%d" % (vT0, vT0))
        e("v_lshl_add_u32 v%d, v%d, 4, v%d" % (vT0, vT1, vT0))
        e("v_subrev_u32 v%d, %d, v%d" % (vOff + j, 1024 * j, vT0))
    e("s_waitcnt lgkmcnt(0)")
    e("s_load_dwordx8 s[80:87], s[54:55], s%d" % sT1)
    srd(sKsrd, 50, KV_BYTES)
    srd(sVsrd, 52, KV_BYTES)
    if stamps:
        srd(sWsrd, 62, WS_STAMP + 131072)
    for k in range(R + 2):
        e("ds_write_b32 v%d, v%d offset:%d" % (vFa, vF, 256 * k))
    e("v_add_u32 v%d, %d, v%d" % (vDa, 256 + 4 * 256, vFa))
    e("v_lshlrev_b32 v%d, 4, v%d" % (vT0, vLane))
    e("v_add_u32 v%d, %d, v%d" % (vT0, TB, vT0))
    e("v_mov_b32 v%d, %d" % (vT1, AB))
    e("s_mov_b32 m0, 0")
    e("s_getpc_b64 %s" % sr(sLo, 2))
    e("L_pc:")
    e("s_add_u32 s%d, s%d, L_var-L_pc" % (sLo, sLo))
    e("s_addc_u32 s%d, s%d, 0" % (sLo + 1, sLo + 1))
    e("s_sub_u32 s%d, s%d, %d" % (sLo, sLo, nmin * 256))
    e("s_subb_u32 s%d, s%d, 0" % (sLo + 1, sLo + 1))
    e("s_waitcnt lgkmcnt(0)")
    cnt = [0]
    def blind_unit(srdn, blk, m0):
        for b2 in range(2):
            if srdn == sKsrd:
                e("s_lshl_b32 s%d, s%d, 17" % (80 + blk + b2, 80 + blk + b2))
                e("s_or_b32 s%d, s%d, s%d" % (80 + blk + b2, 80 + blk + b2, sT2))
            if cnt[0]:
                e("s_mov_b32 m0, %d" % (m0 + 4096 * b2))
                e("s_nop 0")
            elif stamps:
                e("s_memrealtime s[90:91]")
            for j in range(4):
                if cnt[0] >= n1:
                    e("s_waitcnt vmcnt(%d)" % (n1 - 1))
                e("buffer_load_dwordx4 v%d, %s, s%d offen offset:%d nt lds" % (vOff + j, sr(srdn, 4), 80 + blk + b2, 1024 * j))
                cnt[0] += 1
    blind_unit(sKsrd, 0, 0)
    blind_unit(sKsrd, 2, 16384)
    blind_unit(sVsrd, 0, 8192)
    blind_unit(sKsrd, 4, 32768)
    blind_unit(sVsrd, 2, 16384 + 8192)
    e("s_barrier")
    e("ds_read_b128 %s, v%d" % (vr(vTab, 4), vT0))
    e("ds_read_b32 v%d, v%d offset:%d" % (vSl, vFa, SB - FB))
    e("ds_read_b128 %s, v%d" % (vr(vPar, 4), vT1))
    e("ds_read_b32 v%d, v%d" % (vD, vDa))
    e("s_mov_b32 s%d, 2" % sN)
    e("s_mov_b32 s%d, %d" % (sSlot, 32768 + 8192))
    e("s_mov_b32 s%d, 8" % sAcc)
    e("s_waitcnt lgkmcnt(0)")
    e("v_readfirstlane_b32 s%d, v%d" % (sNt, vPar))
    e("v_readfirstlane_b32 s%d, v%d" % (sMask, vPar + 2))
    e("v_readfirstlane_b32 s%d, v%d" % (sMask + 1, vPar + 3))
    e("s_nop 0")
    e("s_min_u32 s%d, s%d, 64" % (sNt, sNt))
    e("L_next:")
    e("s_cmp_ge_u32 s%d, s%d" % (sN, sNt))
    e("s_cbranch_scc1 L_drain")
    e("v_readlane_b32 s%d, v%d, s%d" % (sA0, vTab, sN))
    e("v_readlane_b32 s%d, v%d, s%d" % (sA1, vTab + 1, sN))
    e("v_readlane_b32 s%d, v%d, s%d" % (sB0, vTab + 2, sN))
    e("v_readlane_b32 s%d, v%d, s%d" % (sB1, vTab + 3, sN))
    e("v_readlane_b32 s%d, v%d, s%d" % (sT2, vSl, sN))
    if trace:
        e("s_memrealtime s[94:95]")
    e("L_chk:")
    e("s_waitcnt lgkmcnt(0)")
    if trace:
        e("s_mov_b32 m0, s%d" % sN)
        e("v_writelane_b32 v30, s94, m0")
    e("v_readfirstlane_b32 s%d, v%d" % (sT0, vD))
    e("v_readfirstlane_b32 s%d, v%d" % (sWin, vPar + 1))
    e("s_lshl1_add_u32 s%d, s%d, 1" % (s2n, sN))
    e("s_and_b32 m0, s%d, %d" % (sT2, RING - 16384))
    e("s_add_u32 s%d, s%d, %d" % (sT0, sT0, R - 2))
    e("s_cmp_gt_u32 s%d, s%d" % (sT0, sN))
    e("s_cbranch_scc0 L_slow")
    e("v_add_u32 v%d, %d, v%d" % (vDa, 256 - DB, vDa))
    e("v_and_b32 v%d, %d, v%d" % (vDa, R * 256 - 1, vDa))
    e("v_add_u32 v%d, %d, v%d" % (vDa, DB, vDa))
    e("s_mov_b32 s%d, s%d" % (sMb, sSlot))
    e("s_add_u32 s%d, s%d, 16384" % (sSlot, sSlot))
    e("s_and_b32 s%d, s%d, %d" % (sSlot, sSlot, RING - 1))
    e("s_and_b32 s%d, s%d, 15" % (sAcc, sAcc))
    e("s_add_u32 s%d, s%d, s%d" % (sAcc, sAcc, sWin))
    e("s_lshr_b32 s%d, s%d, 4" % (sT0, sAcc))
    e("s_max_u32 s%d, s%d, %d" % (sT0, sT0, nmin))
    e("s_min_u32 s%d, s%d, %d" % (sT0, sT0, nmax))
    e("s_bitcmp1_b64 %s, s%d" % (sr(sMask, 2), sN))
    e("s_cselect_b32 s%d, %d, 0" % (sT1, nmax - nmin + 1))
    e("s_add_u32 s%d, s%d, s%d" % (sT0, sT0, sT1))
    e("s_add_u32 s%d, s%d, 1" % (sN, sN))
    e("s_lshl_b32 s%d, s%d, 8" % (sT0, sT0))
    e("s_add_u32 s%d, s%d, s%d" % (sJ, sLo, sT0))
    e("s_addc_u32 s%d, s%d, 0" % (sJ + 1, sLo + 1))
    e("ds_read_b32 v%d, v%d" % (vD, vDa))
    e("ds_read_b32 v%d, v%d offset:4" % (vPar + 1, vT1))
    e("s_setpc_b64 %s" % sr(sJ, 2))
    e("L_slow:")
    e("ds_read_b32 v%d, v%d" % (vD, vDa))
    e("s_sub_u32 s%d, s%d, 1" % (sBud, sBud))
    e("s_cbranch_scc0 L_chk")
    e("s_endpgm")
    e("L_drain:")
    e("s_lshl1_add_u32 s%d, s%d, 1" % (s2n, sN))
    for j in range(4, 0, -1):
        e("s_sub_i32 s%d, s%d, %d" % (sT0, s2n, j))
        e("v_mov_b32 v%d, s%d" % (vF, sT0))
        e("s_waitcnt vmcnt(%d)" % (8 * j))
        e("ds_write_b32 v%d, v%d" % (vFa, vF))
    e("v_mov_b32 v%d, s%d" % (vF, s2n))
    e("s_waitcnt vmcnt(0)")
    e("ds_write_b32 v%d, v%d" % (vFa, vF))
    if not stamps:
        e("s_barrier")
    if trace:
        e("s_lshl_b32 s%d, s2, 8" % sT0)
        e("s_add_u32 s%d, s%d, %d" % (sT0, sT0, WS_STAMP + 16384))
        e("v_lshlrev_b32 v31, 2, v%d" % vLane)
        if cntslow:
            e("s_sub_u32 s%d, 0x100000, s%d" % (sT1, sBud))
            e("v_writelane_b32 v30, s%d, 0" % sT1)
        e("buffer_store_dword v30, v31, %s, s%d offen" % (sr(sWsrd, 4), sT0))
    if stamps:
        e("s_memrealtime s[92:93]")
        e("s_barrier")
        e("s_waitcnt lgkmcnt(0)")
        e("s_mov_b32 s96, s92")
        stamp_store(90)
        assert L[-11].startswith("v_mov_b32 v6"), L[-12:]
        L[-11] = "v_mov_b32 v6, s96"
    e("s_endpgm")
    e(".p2align 8")
    e("L_var:")
    for fl in ("nt", ""):
        for n in range(nmin, nmax + 1):
            e(".p2align 8")
            k = 0
            for srdn, sos in ((sKsrd, (sA0, sA1)), (sVsrd, (sB0, sB1))):
                for so in sos:
                    for j in range(4):
                        e("s_waitcnt vmcnt(%d)" % (n - 1))
                        if (k - n + 1) % 8 == 0:
                            e("s_add_i32 s%d, s%d, %d" % (sT0, s2n, (k - n + 1) // 8))
                            e("v_mov_b32 v%d, s%d" % (vF, sT0))
                            e("ds_write_b32 v%d, v%d" % (vFa, vF))
                        e("buffer_load_dwordx4 v%d, %s, s%d offen offset:%d %s lds" % (vOff + j, sr(srdn, 4), so, 1024 * j, fl))
                        k += 1
                    if k == 8:
                        e("s_mov_b32 m0, s%d" % sMb)
                    elif k < 16:
                        e("s_add_u32 m0, m0, 4096")
            e("s_branch L_next")

    sP, sRem, sSl, sF, sTg, sCi = 37, 38, 39, 40, 41, 42
    sNp, sTile = 33, 64
    sNtO, sNtP, sClO, sNbO, sNbP, sBp, sNf, sNtD, sNfs, sHd = 83, 84, 85, 87, 29, 30, 31, 32, 47, 65
    sWin0, sU, sSent, sFb, sOo, sSt, sInt = 82, 94, 95, 67, 80, 68, 66
    vQ = 4
    vAcc = 20
    vS = 52
    vP = 60
    vK = 64
    vV = 96
    vKb, vVb = 128, 129
    vKa = 130
    vVa = 134
    vM, vL = 142, 143
    vT0, vT1, vT2, vT3 = 144, 145, 146, 147
    vAl = 148
    vTok, vFa, vDn, vPoll = 150, 151, 152, 153
    vTile = 154
    vNeg = 155
    vL16, vL8 = 156, 157
    vZ, vOnes = 158, 159
    vPe = 160
    vFM = 168
    vFo = 170
    vSk = 172
    vLs = 174
    NV = 176
    e(".p2align 6")
    e("L_consumer:")
    e("s_memrealtime s[%d:%d]" % (sSt, sSt + 1))
    e("s_sub_u32 s%d, s%d, 1" % (sCi, sW))
    vA, vBi, vClA, vClB, vNtA, vNbB, vKeyA, vKeyB, vRk, vNbA = vK, vK + 1, vK + 2, vK + 3, vK + 4, vK + 5, vK + 6, vK + 7, vK + 8, vK + 10
    e("v_lshrrev_b32 v%d, 3, v%d" % (vA, vLane))
    e("v_and_b32 v%d, 7, v%d" % (vBi, vLane))
    e("v_lshlrev_b32 v%d, 2, v%d" % (vT0, vA))
    e("v_lshlrev_b32 v%d, 2, v%d" % (vT1, vBi))
    e("v_lshlrev_b32 v%d, 8, v%d" % (vT2, vX))
    e("v_lshl_add_u32 v%d, v%d, 4, v%d" % (vT2, vG, vT2))
    e("v_lshlrev_b32 v%d, 4, v%d" % (vL16, vLane))
    e("s_lshl_b32 s%d, s2, 12" % sT1)
    e("s_mov_b32 s%d, 0x%08x" % (sC, C_BITS))
    e("s_lshl_b32 s%d, s%d, 12" % (sT0, sCi))
    e("s_add_u32 m0, s%d, %d" % (sT0, PB))
    e("s_waitcnt lgkmcnt(0)")
    srd(sCsrd, 56, 32)
    e("buffer_load_dword v%d, v%d, %s, 0 offen" % (vClA, vT0, sr(sCsrd, 4)))
    e("buffer_load_dword v%d, v%d, %s, 0 offen" % (vClB, vT1, sr(sCsrd, 4)))
    srd(sBsrd, 54, 4096)
    for k in range(4):
        e("buffer_load_dwordx4 v%d, %s, 0 offen offset:%d lds" % (vL16, sr(sBsrd, 4), 1024 * k))
    srd(sQsrd, 48, QO_BYTES)
    for s in range(4):
        e("buffer_load_dwordx4 %s, v%d, %s, s%d offen offset:%d" % (vr(vQ + 4 * s, 4), vT2, sr(sQsrd, 4), sT1, 64 * s))
    srd(sOsrd, 58, QO_BYTES)
    srd(sDsrd, 60, 256)
    e("s_mov_b32 s%d, 0" % sFb)
    e("v_mov_b32 v%d, 0" % vZ)
    if stamps:
        srd(sWsrd, 62, WS_STAMP + 131072)
    e("v_and_b32 v%d, 7, v%d" % (vT0, vX))
    e("v_lshlrev_b32 v%d, 1, v%d" % (vT0, vT0))
    e("v_xor_b32 v%d, v%d, v%d" % (vT0, vT0, vG))
    e("v_lshlrev_b32 v%d, 4, v%d" % (vT0, vT0))
    e("v_lshl_add_u32 v%d, v%d, 8, v%d" % (vKb, vX, vT0))
    e("v_lshrrev_b32 v%d, 2, v%d" % (vT0, vX))
    e("v_lshl_add_u32 v%d, v%d, 2, v%d" % (vT0, vG, vT0))
    e("v_and_b32 v%d, 7, v%d" % (vT2, vT0))
    e("v_lshlrev_b32 v%d, 5, v%d" % (vT2, vT2))
    e("v_lshl_add_u32 v%d, v%d, 8, v%d" % (vT2, vT0, vT2))
    e("v_and_b32 v%d, 3, v%d" % (vT0, vX))
    e("v_lshl_add_u32 v%d, v%d, 3, v%d" % (vVb, vT0, vT2))
    e("v_add_u32 v%d, 8192, v%d" % (vVb, vVb))
    e("v_lshlrev_b32 v%d, 2, v%d" % (vFa, vLane))
    e("v_add_u32 v%d, %d, v%d" % (vFa, FB, vFa))
    e("v_lshlrev_b32 v%d, 2, v%d" % (vTok, vG))
    e("v_lshlrev_b32 v%d, 3, v%d" % (vL8, vLane))
    e("v_mov_b32 v%d, 0x%08x" % (vNeg, NEG_BIG))
    e("v_mov_b32 v%d, 2048" % vT3)
    e("v_sub_u32 v%d, 7, v%d" % (vKeyA, vA))
    e("v_sub_u32 v%d, 7, v%d" % (vKeyB, vBi))
    e("v_and_b32 v%d, 56, v%d" % (vT2, vLane))
    e("s_lshl_b32 s%d, s%d, 3" % (sT0, sB))
    e("s_waitcnt vmcnt(8)")
    e("v_cmp_gt_i32 vcc, 1, v%d" % vClA)
    e("v_cmp_gt_i32 s[70:71], 1, v%d" % vClB)
    e("v_min_i32 v%d, v%d, v%d" % (vClA, vClA, vT3))
    e("v_min_i32 v%d, v%d, v%d" % (vClB, vClB, vT3))
    e("v_cndmask_b32 v%d, v%d, v%d, vcc" % (vT0, vClA, vT3))
    e("v_cndmask_b32 v%d, v%d, v%d, s[70:71]" % (vT1, vClB, vT3))
    e("v_add_u32 v%d, 15, v%d" % (vT0, vT0))
    e("v_add_u32 v%d, 15, v%d" % (vT1, vT1))
    e("v_lshrrev_b32 v%d, 4, v%d" % (vNbA, vT0))
    e("v_lshrrev_b32 v%d, 4, v%d" % (vNbB, vT1))
    e("v_add_u32 v%d, 1, v%d" % (vT0, vNbA))
    e("v_add_u32 v%d, 1, v%d" % (vT1, vNbB))
    e("v_lshrrev_b32 v%d, 1, v%d" % (vNtA, vT0))
    e("v_lshrrev_b32 v%d, 1, v%d" % (vT1, vT1))
    e("v_lshl_add_u32 v%d, v%d, 3, v%d" % (vKeyA, vNtA, vKeyA))
    e("v_lshl_add_u32 v%d, v%d, 3, v%d" % (vKeyB, vT1, vKeyB))
    e("v_cmp_gt_u32 s[70:71], v%d, v%d" % (vKeyB, vKeyA))
    e("v_readlane_b32 s%d, v%d, s%d" % (sNtO, vNtA, sT0))
    e("v_readlane_b32 s%d, v%d, s%d" % (sClO, vClA, sT0))
    e("v_lshrrev_b64 %s, v%d, s[70:71]" % (vr(vRk, 2), vT2))
    e("v_readlane_b32 s%d, v%d, s%d" % (sNbO, vNbA, sT0))
    e("v_and_b32 v%d, 0xff, v%d" % (vRk, vRk))
    e("v_bcnt_u32_b32 v%d, v%d, 0" % (vRk, vRk))
    e("s_nop 0")
    e("v_readlane_b32 s%d, v%d, s%d" % (sT1, vRk, sT0))
    e("s_nop 1")
    e("s_sub_u32 s%d, 7, s%d" % (sT2, sT1))
    e("v_cmp_eq_u32 s[70:71], s%d, v%d" % (sT2, vRk))
    e("s_nop 1")
    e("s_ff1_i32_b64 s%d, s[70:71]" % sT2)
    e("s_lshr_b32 s%d, s%d, 3" % (sBp, sT2))
    e("s_and_b32 s%d, s%d, 7" % (sBp, sBp))
    e("v_readlane_b32 s%d, v%d, s%d" % (sNtP, vNtA, sT2))
    e("v_readlane_b32 s%d, v%d, s%d" % (sNbP, vNbA, sT2))
    e("s_nop 1")
    e("s_sub_i32 s%d, s%d, s%d" % (sNf, sNtP, sNtO))
    e("s_bitcmp1_b32 0x%08x, s%d" % (smask, sH))
    e("s_cselect_b32 s%d, %d, %d" % (sT2, int(fmul2 * 32), int(fmul * 32)))
    e("s_cmp_eq_u32 s%d, 31" % sH)
    e("s_cselect_b32 s%d, %d, s%d" % (sT2, int(fmul31 * 32), sT2))
    e("s_mul_i32 s%d, s%d, s%d" % (sNf, sNf, sT2))
    e("s_ashr_i32 s%d, s%d, 6" % (sNf, sNf))
    e("s_mul_i32 s%d, s%d, %d" % (sT2, sNtO, 14 if fl8 else 13))
    e("s_lshr_b32 s%d, s%d, 4" % (sT2, sT2))
    e("s_sub_i32 s%d, s%d, 3" % (sT2, sT2))
    e("s_min_i32 s%d, s%d, s%d" % (sNf, sNf, sT2))
    e("s_sub_i32 s%d, 64, s%d" % (sT2, sNtO))
    e("s_min_i32 s%d, s%d, s%d" % (sNf, sNf, sT2))
    e("s_cmp_lt_i32 s%d, %d" % (sNf, nfmin))
    e("s_cselect_b32 s%d, 0, s%d" % (sNf, sNf))
    e("s_cmp_ge_u32 s%d, 6" % sBp)
    e("s_addc_u32 s%d, s3, s%d" % (sHd, sBp))
    e("s_and_b32 s%d, s%d, 31" % (sHd, sHd))
    e("s_bitcmp1_b32 0x%08x, s%d" % (smask, sHd))
    e("s_cselect_b32 s%d, s%d, 0" % (sNf, sNf))
    e("s_cmp_lt_u32 s%d, 4" % sT1)
    e("s_cselect_b32 s%d, 0, s%d" % (sNf, sNf))
    e("s_add_u32 s%d, s%d, s%d" % (sNp, sNtO, sNf))
    assert lam <= 0.07
    e("s_mul_i32 s%d, s%d, %d" % (sT0, sNp, int(lam * 256)))
    e("s_lshr_b32 s%d, s%d, 8" % (sT0, sT0))
    e("s_add_u32 s%d, s%d, 3" % (sT0, sT0))
    e("s_sub_i32 s%d, s%d, s%d" % (sT0, sNp, sT0))
    e("s_max_i32 s%d, s%d, 1" % (sT0, sT0))
    vCa, vCb, vTf, vRow, vNbx, vHo, vTa, vE = vK, vK + 1, vK + 2, vK + 3, vK + 4, vK + 6, vK + 7, vK + 12
    e("v_cvt_f32_u32 v%d, s%d" % (vT0, sT0))
    e("v_cvt_f32_u32 v%d, s%d" % (vT1, sNf))
    e("v_rcp_f32 v%d, v%d" % (vT0, vT0))
    e("v_cvt_f32_u32 v%d, v%d" % (vT2, vLane))
    e("v_mul_f32 v%d, v%d, v%d" % (vT0, vT0, vT1))
    e("v_add_f32 v%d, -2.0, v%d" % (vCa, vT2))
    e("v_add_f32 v%d, -1.0, v%d" % (vCb, vT2))
    e("v_mov_b32 v%d, 0x%08x" % (vT3, f2u(0.01)))
    e("v_fma_f32 v%d, v%d, v%d, v%d" % (vCa, vCa, vT0, vT3))
    e("v_fma_f32 v%d, v%d, v%d, v%d" % (vCb, vCb, vT0, vT3))
    e("v_med3_f32 v%d, v%d, 0, v%d" % (vCa, vCa, vT1))
    e("v_med3_f32 v%d, v%d, 0, v%d" % (vCb, vCb, vT1))
    e("v_cvt_u32_f32 v%d, v%d" % (vCa, vCa))
    e("v_cvt_u32_f32 v%d, v%d" % (vCb, vCb))
    e("v_cmp_gt_u32 vcc, v%d, v%d" % (vCb, vCa))
    e("v_sub_u32 v%d, v%d, v%d" % (vCa, vLane, vCa))
    e("v_mov_b32 v%d, -1" % vT3)
    e("s_cmp_lg_u32 s%d, 0" % sCi)
    e("v_cndmask_b32 v%d, v%d, v%d, vcc" % (vTile, vCa, vT3))
    e("s_cbranch_scc1 L_notab")
    e("v_cvt_f32_u32 v%d, s%d" % (vT0, sNp))
    e("v_cvt_f32_u32 v%d, s%d" % (vT1, sNtP))
    e("v_rcp_f32 v%d, v%d" % (vT0, vT0))
    e("v_mov_b32 v%d, 0x%08x" % (vT3, f2u(lam)))
    e("s_sub_u32 s%d, s%d, 1" % (sT2, sNtP))
    e("v_fma_f32 v%d, v%d, v%d, v%d" % (vT0, vT0, vT2, vT3))
    e("v_mul_f32 v%d, v%d, v%d" % (vT0, vT0, vT1))
    e("v_add_f32 v%d, 0x%08x, v%d" % (vT0, f2u(toff), vT0))
    e("v_cvt_u32_f32 v%d, v%d" % (vTf, vT0))
    e("v_min_u32 v%d, s%d, v%d" % (vTf, sT2, vTf))
    e("v_cndmask_b32 v%d, v%d, v%d, vcc" % (vCa, vCa, vTf))
    e("v_add_u32 v%d, 1, v%d" % (vTa, vCa))
    e("v_mov_b32 v%d, s%d" % (vT0, sB))
    e("v_mov_b32 v%d, s%d" % (vT1, sBp))
    e("v_cndmask_b32 v%d, v%d, v%d, vcc" % (vRow, vT0, vT1))
    e("v_lshlrev_b32 v%d, 9, v%d" % (vRow, vRow))
    e("v_lshl_add_u32 v%d, v%d, 3, v%d" % (vT0, vTa, vRow))
    e("v_lshl_add_u32 v%d, v%d, 3, v%d" % (vT1, vCa, vRow))
    e("v_and_b32 v%d, 0xff8, v%d" % (vT0, vT0))
    e("v_and_b32 v%d, 0xff8, v%d" % (vT1, vT1))
    e("v_add_u32 v%d, %d, v%d" % (vT0, PB, vT0))
    e("v_add_u32 v%d, %d, v%d" % (vT1, PB, vT1))
    e("s_waitcnt vmcnt(4)")
    e("ds_read_b64 %s, v%d" % (vr(vE, 2), vT0))
    e("ds_read_b64 %s, v%d" % (vr(vE + 2, 2), vT1))
    e("v_mov_b32 v%d, s%d" % (vT0, sNbO))
    e("v_mov_b32 v%d, s%d" % (vT1, sNbP))
    e("v_cndmask_b32 v%d, v%d, v%d, vcc" % (vNbx, vT0, vT1))
    e("s_lshl_b32 s70, s%d, 8" % sHd)
    e("s_lshl_b32 s71, s%d, 8" % sH)
    e("v_mov_b32 v%d, s70" % vT2)
    e("v_mov_b32 v%d, s71" % vT3)
    e("v_cndmask_b32 v%d, v%d, v%d, vcc" % (vHo, vT3, vT2))
    e("s_lshr_b64 s[70:71], vcc, 1")
    e("v_mov_b32 v%d, 1" % vT0)
    e("v_cndmask_b32 v%d, v%d, 2, s[70:71]" % (vT0, vT0))
    e("v_cndmask_b32 v%d, v%d, 0, vcc" % (vT0, vT0))
    e("v_add_u32 v%d, v%d, v%d" % (vT0, vT0, vLane))
    e("v_lshlrev_b32 v%d, 14, v%d" % (vT0, vT0))
    e("ds_write_b32 v%d, v%d offset:%d" % (vFa, vT0, SB - FB))
    e("v_mov_b32 v%d, vcc_lo" % vT2)
    e("v_mov_b32 v%d, vcc_hi" % vT3)
    e("v_lshlrev_b32 v%d, 1, v%d" % (vTa, vTa))
    e("v_lshl_add_u32 v%d, v%d, 1, 1" % (vCa, vCa))
    e("v_add_u32 v%d, 1, v%d" % (vTf, vTa))
    e("v_cmp_gt_u32 s[8:9], v%d, v%d" % (vNbx, vTa))
    e("v_cmp_gt_u32 s[10:11], v%d, v%d" % (vNbx, vTf))
    e("v_cmp_gt_u32 vcc, v%d, v%d" % (vNbx, vCa))
    e("v_readlane_b32 s%d, v%d, 0" % (sT2, vNbB))
    for b in range(1, 8):
        e("v_readlane_b32 s70, v%d, %d" % (vNbB, b))
        e("s_nop 0")
        e("s_add_u32 s%d, s%d, s70" % (sT2, sT2))
    e("s_mul_i32 s70, s%d, %d" % (sNf, int(32 * hw)))
    e("s_lshl_b32 s71, s%d, 4" % sNbO)
    e("s_add_u32 s70, s70, s71")
    e("v_cvt_f32_u32 v%d, s%d" % (vT0, sT2))
    e("v_cvt_f32_u32 v%d, s70" % vT1)
    e("v_rcp_f32 v%d, v%d" % (vT0, vT0))
    e("v_mul_f32 v%d, 0x%08x, v%d" % (vT1, f2u(N * 8.0), vT1))
    e("v_mul_f32 v%d, v%d, v%d" % (vT0, vT0, vT1))
    e("v_mul_f32 v%d, 0x%08x, v%d" % (vT1, f2u(1 + gamma), vT0))
    e("v_mul_f32 v%d, 0x%08x, v%d" % (vT0, f2u(1 + gneg), vT0))
    e("v_add_f32 v%d, 0x%08x, v%d" % (vT1, f2u((gstep - gamma) * N * 16), vT1))
    e("v_add_f32 v%d, 0x%08x, v%d" % (vT0, f2u(-gneg * N * 16), vT0))
    e("v_max_f32 v%d, v%d, v%d" % (vT0, vT0, vT1))
    packed = 0
    for i, x in enumerate(xtab):
        packed |= (int(round(x / 0.25)) + 8) << (4 * i)
    e("s_getreg_b32 s70, hwreg(HW_REG_XCC_ID, 0, 3)")
    e("s_lshl_b32 s70, s70, 2")
    e("s_lshr_b32 s70, 0x%08x, s70" % packed)
    e("s_and_b32 s70, s70, 15")
    e("v_cvt_f32_u32 v%d, s70" % vT1)
    e("v_mov_b32 v%d, 0x%08x" % (vAl, f2u(1.0 - 8 * 0.0025)))
    e("v_fmac_f32 v%d, 0x%08x, v%d" % (vAl, f2u(0.0025), vT1))
    e("v_mul_f32 v%d, v%d, v%d" % (vT0, vT0, vAl))
    e("s_bitcmp1_b32 0x%08x, s%d" % (smask, sH))
    e("s_cselect_b32 s70, 0x%08x, 1.0" % f2u(1 + c1b))
    e("v_mul_f32 v%d, s70, v%d" % (vT0, vT0))
    e("v_max_f32 v%d, 0, v%d" % (vT0, vT0))
    e("v_cvt_u32_f32 v%d, v%d" % (vT1, vT0))
    if useF:
        e("s_lshl1_add_u32 s70, s%d, 1" % sNp)
        e("v_cvt_f32_u32 v%d, s70" % vT0)
    else:
        e("v_cvt_f32_u32 v%d, s%d" % (vT0, sNp))
    e("v_rcp_f32 v%d, v%d" % (vT0, vT0))
    e("v_readfirstlane_b32 s%d, v%d" % (sWin0, vT1))
    e("v_mul_f32 v%d, 0x%08x, v%d" % (vT0, f2u(255.0 * 256.0), vT0))
    e("v_cvt_u32_f32 v%d, v%d" % (vT0, vT0))
    e("s_mov_b32 s%d, 1" % sFb)
    e("v_readfirstlane_b32 s%d, v%d" % (sU, vT0))
    e("s_lshr_b32 s%d, s3, 3" % sOo)
    e("v_mov_b32 v%d, 0x01010101" % vOnes)
    e("s_mov_b32 s%d, 0" % sSent)
    if ki:
        e("s_mov_b32 s%d, 0" % sInt)
    e("v_mov_b32 v%d, s%d" % (vT0, sNp))
    e("v_mov_b32 v%d, %d" % (vAl, AB))
    e("s_mov_b64 exec, 1")
    e("ds_write_b128 v%d, %s" % (vAl, vr(vT0, 4)))
    e("s_mov_b64 exec, -1")
    e("v_add_u32 v%d, %d, v%d" % (vAl, TB, vL16))
    e("v_mov_b32 v%d, %d" % (vAl + 1, KV_BYTES))
    e("s_waitcnt lgkmcnt(0)")
    for k in range(4):
        e("v_lshl_add_u32 v%d, v%d, 17, v%d" % (vE + k, vE + k, vHo))
    e("v_cndmask_b32 v%d, v%d, v%d, s[8:9]" % (vE, vAl + 1, vE))
    e("v_cndmask_b32 v%d, v%d, v%d, s[10:11]" % (vE + 1, vAl + 1, vE + 1))
    e("v_cndmask_b32 v%d, v%d, v%d, vcc" % (vE + 3, vAl + 1, vE + 3))
    e("ds_write_b128 v%d, %s" % (vAl, vr(vE, 4)))
    e("s_waitcnt lgkmcnt(0)")
    e("L_notab:")
    e("s_barrier")
    e("s_mov_b32 s%d, s%d" % (sP, sCi))
    e("s_mov_b32 s%d, 0" % sF)
    for i in range(32):
        e("v_mov_b32 v%d, 0" % (vAcc + i))
    e("v_mov_b32 v%d, v%d" % (vM, vNeg))
    e("v_mov_b32 v%d, 0" % vL)
    e("v_add_u32 v%d, %d, v%d" % (vL16, PB, vL16))
    e("v_add_u32 v%d, %d, v%d" % (vL8, PB, vL8))
    e("s_waitcnt vmcnt(0) lgkmcnt(0)")
    e("s_lshl_b32 s%d, s%d, 8" % (sT0, sFb))
    e("s_or_b32 s%d, s%d, s3" % (sT0, sT0))
    e("s_cmp_lt_u32 s%d, 8" % sT0)
    e("s_cbranch_scc0 L_ctile")
    e("v_mov_b32 v%d, s%d" % (vSk, sSt))
    e("v_mov_b32 v%d, 0x100" % (vSk + 1))
    e("s_mov_b64 exec, 1")
    e("buffer_atomic_add_x2 %s, v%d, %s, 0 offen offset:128" % (vr(vSk, 2), vZ, sr(sDsrd, 4)))
    if xlead:
        e("buffer_store_dword v%d, v%d, %s, 0 offen offset:32" % (vSk, vZ, sr(sDsrd, 4)))
    e("s_mov_b64 exec, -1")

    def poll(tag):
        e("s_cmp_ge_i32 s%d, s%d" % (sF, sTg))
        e("s_cbranch_scc1 L_ok_%s" % tag)
        e("L_poll_%s:" % tag)
        e("ds_read_b32 v%d, v%d" % (vPoll, vFa))
        e("s_sub_u32 s%d, s%d, 1" % (sBud, sBud))
        e("s_cbranch_scc1 L_end")
        e("s_waitcnt lgkmcnt(0)")
        e("v_readfirstlane_b32 s%d, v%d" % (sF, vPoll))
        e("s_nop 0")
        e("s_cmp_ge_i32 s%d, s%d" % (sF, sTg))
        e("s_cbranch_scc0 L_poll_%s" % tag)
        e("L_ok_%s:" % tag)
    def pollx(tag, val):
        e("L_pollx%s:" % tag)
        e("ds_read_b32 v%d, v%d offset:%d" % (vPoll, vFa, XB - FB))
        e("s_sub_u32 s%d, s%d, 1" % (sBud, sBud))
        e("s_cbranch_scc1 L_end")
        e("s_waitcnt lgkmcnt(0)")
        e("v_readfirstlane_b32 s%d, v%d" % (sT0, vPoll))
        e("s_nop 0")
        e("s_cmp_lt_u32 s%d, %d" % (sT0, val))
        e("s_cbranch_scc1 L_pollx%s" % tag)

    MK = [8, 10, 12, 14, 20, 22, 24, 26]
    def tile_code(last):
        tg = "l" if last else ""
        e("s_lshl_b32 s%d, s%d, 14" % (sSl, sT1))
        e("s_max_u32 s%d, s%d, 1" % (sTg, sTg))
        e("v_add_u32 v%d, s%d, v%d" % (vKa, sSl, vKb))
        e("v_add_u32 v%d, s%d, v%d" % (vVa, sSl, vVb))
        for s in range(1, 4):
            e("v_xor_b32 v%d, %d, v%d" % (vKa + s, 64 * s, vKa))
        for i in range(1, 8):
            e("v_xor_b32 v%d, %d, v%d" % (vVa + i, 32 * i, vVa))
        e("s_lshl_b32 s%d, s%d, 5" % (sT0, sTile))
        e("s_sub_i32 s%d, s%d, s%d" % (sRem, sClO, sT0))
        if last:
            e("v_and_b32 v%d, 1, v%d" % (vT2, vG))
            e("v_lshlrev_b32 v%d, 5, v%d" % (vT2, vT2))
            e("v_lshrrev_b32 v%d, 1, v%d" % (vT3, vG))
            e("v_lshl_add_u32 v%d, v%d, 4, v%d" % (vT2, vT3, vT2))
            e("v_lshl_add_u32 v%d, v%d, 8, v%d" % (vDn, vX, vT2))
            e("s_lshl_b32 s%d, s2, 12" % sT2)
            for b2 in range(2):
                for r in range(4):
                    e("s_sub_i32 s%d, s%d, %d" % (sT0, sRem, 16 * b2 + r))
                    e("v_cmp_gt_i32 %s, s%d, v%d" % (sr(MK[4 * b2 + r], 2), sT0, vTok))
        poll("k" + tg)
        if last and tdiag:
            e("s_memrealtime s[90:91]")
        for s in range(4):
            for b2 in range(2):
                e("ds_read_b128 %s, v%d offset:%d" % (vr(vK + 16 * b2 + 4 * s, 4), vKa + s, 4096 * b2))
        for s in range(4):
            for b2 in range(2):
                e("s_waitcnt lgkmcnt(%d)" % (0 if (last and tdiag) else 7 - 2 * s - b2))
                c = "0" if s == 0 else vr(vS + 4 * b2, 4)
                e("v_mfma_f32_16x16x32_bf16 %s, %s, %s, %s" %
                  (vr(vS + 4 * b2, 4), vr(vK + 16 * b2 + 4 * s, 4), vr(vQ + 4 * s, 4), c))
        if last:
            pollx("a", 1)
            e("ds_read_b64 %s, v%d offset:8192" % (vr(vFM, 2), vL8))
            for i in range(8):
                e("v_cndmask_b32 v%d, v%d, v%d, %s" % (vS + i, vNeg, vS + i, sr(MK[i], 2)))
        else:
            e("s_lshl1_add_u32 s%d, s%d, -1" % (sTg, sP))
            e("s_cmp_ge_i32 s%d, 32" % sRem)
            e("s_nop 5")
            e("s_cbranch_scc1 L_nomask")
            for b2 in range(2):
                for r in range(4):
                    e("s_sub_i32 s%d, s%d, %d" % (sT0, sRem, 16 * b2 + r))
                    e("v_cmp_gt_i32 vcc, s%d, v%d" % (sT0, vTok))
                    e("s_nop 1")
                    e("v_cndmask_b32 v%d, v%d, v%d, vcc" % (vS + 4 * b2 + r, vNeg, vS + 4 * b2 + r))
            e("L_nomask:")
        e("v_max3_f32 v%d, v%d, v%d, v%d" % (vT0, vS, vS + 1, vS + 2))
        e("v_max3_f32 v%d, v%d, v%d, v%d" % (vT1, vS + 3, vS + 4, vS + 5))
        e("v_max3_f32 v%d, v%d, v%d, v%d" % (vT0, vT0, vS + 6, vS + 7))
        e("v_max3_f32 v%d, v%d, v%d, v%d" % (vT0, vT0, vT1, vM))
        e("v_mov_b32 v%d, v%d" % (vT1, vT0))
        e("s_nop 1")
        e("v_permlane16_swap_b32 v%d, v%d" % (vT0, vT1))
        e("v_max_f32 v%d, v%d, v%d" % (vT0, vT0, vT1))
        e("v_mov_b32 v%d, v%d" % (vT1, vT0))
        e("s_nop 1")
        e("v_permlane32_swap_b32 v%d, v%d" % (vT0, vT1))
        if last:
            e("s_waitcnt lgkmcnt(0)")
            e("v_max3_f32 v%d, v%d, v%d, v%d" % (vT0, vT0, vT1, vFM))
            e("v_sub_f32 v%d, v%d, v%d" % (vFo, vFM, vT0))
        else:
            e("v_max_f32 v%d, v%d, v%d" % (vT0, vT0, vT1))
        e("v_sub_f32 v%d, v%d, v%d" % (vT1, vM, vT0))
        e("v_mul_f32 v%d, s%d, v%d" % (vT2, sC, vT0))
        e("v_mul_f32 v%d, s%d, v%d" % (vT1, sC, vT1))
        if last:
            e("v_mul_f32 v%d, s%d, v%d" % (vFo, sC, vFo))
        else:
            e("v_mov_b32 v%d, v%d" % (vM, vT0))
        e("v_exp_f32 v%d, v%d" % (vAl, vT1))
        if last:
            e("v_exp_f32 v%d, v%d" % (vFo, vFo))
        for i in range(8):
            e("v_fma_f32 v%d, v%d, s%d, -v%d" % (vS + i, vS + i, sC, vT2))
        for i in range(8):
            e("v_exp_f32 v%d, v%d" % (vS + i, vS + i))
        if last:
            e("v_mul_f32 v%d, v%d, v%d" % (vL, vL, vAl))
            e("v_fma_f32 v%d, v%d, v%d, v%d" % (vL, vFM + 1, vFo, vL))
        else:
            e("s_cmp_lt_u32 s%d, s%d" % (sP, sNp))
            e("s_nop 0")
        e("v_add_f32 v%d, v%d, v%d" % (vT0, vS, vS + 1))
        e("v_add_f32 v%d, v%d, v%d" % (vT1, vS + 2, vS + 3))
        e("v_add_f32 v%d, v%d, v%d" % (vT2, vS + 4, vS + 5))
        e("v_add_f32 v%d, v%d, v%d" % (vT0, vT0, vT1))
        e("v_add_f32 v%d, v%d, v%d" % (vT1, vS + 6, vS + 7))
        e("v_add_f32 v%d, v%d, v%d" % (vT0, vT0, vT2))
        e("v_add_f32 v%d, v%d, v%d" % (vT0, vT0, vT1))
        if not last:
            e("v_fma_f32 v%d, v%d, v%d, v%d" % (vL, vL, vAl, vT0))
            e("s_cbranch_scc1 L_more")
            e("v_mov_b32 v%d, 1" % vT0)
            e("ds_write_b64 v%d, %s offset:8192" % (vL8, vr(vM, 2)))
            e("s_waitcnt lgkmcnt(0)")
            e("ds_write_b32 v%d, v%d offset:%d" % (vFa, vT0, XB - FB))
            e("L_more:")
            for i in range(0, 32, 2):
                e("v_pk_mul_f32 %s, %s, %s op_sel_hi:[1,0]" % (vr(vAcc + i, 2), vr(vAcc + i, 2), vr(vAl, 2)))
            for m in range(4):
                e("v_cvt_pk_bf16_f32 v%d, v%d, v%d" % (vP + m, vS + 2 * m, vS + 2 * m + 1))
            poll("v")
        else:
            e("v_add_f32 v%d, v%d, v%d" % (vT0, vT0, vL))
            e("v_mov_b32 v%d, v%d" % (vT1, vT0))
            e("s_nop 1")
            e("v_permlane16_swap_b32 v%d, v%d" % (vT0, vT1))
            e("v_add_f32 v%d, v%d, v%d" % (vT0, vT0, vT1))
            e("v_mov_b32 v%d, v%d" % (vT1, vT0))
            e("s_nop 1")
            e("v_permlane32_swap_b32 v%d, v%d" % (vT0, vT1))
            e("v_add_f32 v%d, v%d, v%d" % (vT0, vT0, vT1))
            e("v_rcp_f32 v%d, v%d" % (vT2, vT0))
            e("s_nop 0")
            e("v_mul_f32 v%d, v%d, v%d" % (vAl, vAl, vT2))
            e("v_mul_f32 v%d, v%d, v%d" % (vFo, vFo, vT2))
            for i in range(0, 8, 2):
                e("v_pk_mul_f32 %s, %s, %s op_sel_hi:[1,0]" % (vr(vS + i, 2), vr(vS + i, 2), vr(vT2, 2)))
            for m in range(4):
                e("v_cvt_pk_bf16_f32 v%d, v%d, v%d" % (vP + m, vS + 2 * m, vS + 2 * m + 1))
            for i in range(0, 32, 2):
                e("v_pk_mul_f32 %s, %s, %s op_sel_hi:[1,0]" % (vr(vAcc + i, 2), vr(vAcc + i, 2), vr(vAl, 2)))
            if tdiag:
                e("s_memrealtime s[84:85]")
            if midbar:
                e("s_lshl1_add_u32 s%d, s%d, 1" % (sTg, sNp))
                poll("vl")
            else:
                e("s_barrier")
            if tdiag:
                e("s_memrealtime s[86:87]")
                e("s_waitcnt lgkmcnt(0)")
        def vread(i):
            for b2 in range(2):
                e("ds_read_b64_tr_b16 %s, v%d offset:%d" % (vr(vV + 4 * i + 2 * b2, 2), vVa + i, 4096 * b2))
        def oread(i):
            e("ds_read_b128 %s, v%d offset:%d" % (vr(vK + 4 * i, 4), vL16, 1024 * i))
        def outp(p):
            for i in range(8 * p, 8 * p + 8, 2):
                e("v_pk_fma_f32 %s, %s, %s, %s op_sel_hi:[1,0,1]" % (vr(vAcc + i, 2), vr(vK + i, 2), vr(vFo, 2), vr(vAcc + i, 2)))
            for m in range(4):
                e("v_cvt_pk_bf16_f32 v%d, v%d, v%d" % (vQ + 4 * p + m, vAcc + 8 * p + 2 * m, vAcc + 8 * p + 2 * m + 1))
            e("s_nop 1")
            e("v_permlane16_swap_b32 v%d, v%d" % (vQ + 4 * p, vQ + 4 * p + 2))
            e("v_permlane16_swap_b32 v%d, v%d" % (vQ + 4 * p + 1, vQ + 4 * p + 3))
            e("buffer_store_dwordx4 %s, v%d, %s, s%d offen offset:%d" % (vr(vQ + 4 * p, 4), vDn, sr(sOsrd, 4), sT2, 64 * p))
        def mfma(i):
            e("v_mfma_f32_16x16x32_bf16 %s, %s, %s, %s" %
              (vr(vAcc + 4 * i, 4), vr(vV + 4 * i, 4), vr(vP, 4), vr(vAcc + 4 * i, 4)))
        for i in range(4):
            vread(i)
        if not last:
            for i in range(8):
                if i < 4:
                    vread(i + 4)
                    e("s_waitcnt lgkmcnt(8)")
                else:
                    e("s_waitcnt lgkmcnt(%d)" % (2 * (7 - i)))
                if i == 7:
                    e("ds_write_b32 v%d, v%d offset:256" % (vDn, vT3))
                mfma(i)
        else:
            for i in range(4):
                vread(i + 4)
                e("s_waitcnt lgkmcnt(8)")
                mfma(i)
            if midbar:
                e("s_barrier")
            for i in range(4, 8):
                oread(2 * (i - 4)); oread(2 * (i - 4) + 1)
                e("s_waitcnt lgkmcnt(8)")
                mfma(i)
            for p in range(4):
                e("s_waitcnt lgkmcnt(%d)" % (6 - 2 * p))
                outp(p)

    e("L_ctile:")
    e("s_cmp_ge_u32 s%d, s%d" % (sP, sNp))
    e("s_cbranch_scc1 L_cdone")
    e("s_cmp_lg_u32 s%d, 0" % sFb)
    e("s_cbranch_scc1 L_fb")
    e("L_fbret:")
    e("v_readlane_b32 s%d, v%d, s%d" % (sTile, vTile, sP))
    e("s_and_b32 s%d, s%d, %d" % (sT1, sP, R - 1))
    e("s_lshl_b32 s%d, s%d, 8" % (sT0, sT1))
    e("v_add_u32 v%d, s%d, v%d" % (vDn, sT0, vFa))
    e("s_add_u32 s%d, s%d, 1" % (sT2, sP))
    e("v_mov_b32 v%d, s%d" % (vT3, sT2))
    e("s_lshl_b32 s%d, s%d, 1" % (sTg, sP))
    e("s_add_u32 s%d, s%d, 2" % (sP, sP))
    e("s_cmp_eq_u32 s%d, s%d" % (sT2, sNp))
    e("s_cbranch_scc1 L_last")
    e("s_cmp_lt_i32 s%d, 0" % sTile)
    e("s_cbranch_scc1 L_skip")
    tile_code(False)
    e("s_branch L_ctile")
    e("L_skip:")
    e("ds_write_b32 v%d, v%d offset:256" % (vDn, vT3))
    e("s_branch L_ctile")

    e("L_fb:")
    if useF:
        e("ds_read_b32 v%d, v%d" % (vPoll, vFa))
    e("s_waitcnt vmcnt(0)")
    e("s_cmp_lg_u32 s%d, 6" % sP)
    e("s_cbranch_scc1 L_fbns")
    e("v_readfirstlane_b32 s70, v%d" % vSk)
    e("v_readfirstlane_b32 s71, v%d" % (vSk + 1))
    e("s_nop 0")
    e("s_lshr_b32 s%d, s71, 8" % sT0)
    e("s_cmp_lg_u32 s%d, 8" % sT0)
    e("s_cbranch_scc1 L_fbns")
    e("s_lshr_b64 s[70:71], s[70:71], 3")
    if xlead:
        e("v_readfirstlane_b32 s%d, v%d" % (sT0, vLs))
        e("s_nop 0")
        e("s_cmp_eq_u32 s%d, 0" % sT0)
        e("s_cbranch_scc1 L_fbns")
        e("s_sub_i32 s%d, s%d, s70" % (sT0, sT0))
    else:
        e("s_sub_i32 s%d, s%d, s70" % (sT0, sSt))
    e("s_min_i32 s%d, s%d, 150" % (sT0, sT0))
    e("s_max_i32 s%d, s%d, -150" % (sT0, sT0))
    e("s_mul_i32 s%d, s%d, s%d" % (sT0, sT0, sWin0))
    e("s_mul_i32 s%d, s%d, %d" % (sT0, sT0, int(ks * 0.01 * 65536)))
    e("s_ashr_i32 s%d, s%d, 16" % (sT0, sT0))
    e("s_add_i32 s%d, s%d, s%d" % (sWin0, sWin0, sT0))
    e("L_fbns:")
    e("s_add_u32 s%d, s%d, %d" % (sT0, sP, pstop))
    e("s_cmp_gt_u32 s%d, s%d" % (sT0, sNp))
    e("s_cbranch_scc1 L_fbpost")
    e("s_cmp_lt_u32 s%d, %d" % (sP, pstart + 2))
    e("s_cbranch_scc1 L_fbpost")
    e("v_dot4_u32_u8 v%d, v%d, v%d, 0" % (vT0, vPe, vOnes))
    for i in range(1, 8):
        e("v_dot4_u32_u8 v%d, v%d, v%d, v%d" % (vT0, vPe + i, vOnes, vT0))
    e("s_mul_i32 s%d, s%d, %d" % (sT1, sU, int(lag * (32 if useF else 16))))
    e("s_lshr_b32 s%d, s%d, 4" % (sT1, sT1))
    e("s_nop 1")
    e("v_readfirstlane_b32 s%d, v%d" % (sT0, vT0))
    e("s_sub_i32 s%d, s%d, s%d" % (sT1, sT1, sSent))
    e("s_lshl_b32 s%d, s%d, 3" % (sT0, sT0))
    e("s_add_i32 s%d, s%d, s%d" % (sT0, sT0, sT1))
    e("s_abs_i32 s%d, s%d" % (sT1, sT0))
    e("s_cmp_gt_u32 s%d, %d" % (sT1, int(guard * 65280)))
    e("s_cselect_b32 s%d, 0, s%d" % (sT0, sT0))
    if ki:
        e("s_mul_i32 s%d, s%d, %d" % (sT1, sT0, int(ki * 16)))
        e("s_ashr_i32 s%d, s%d, 8" % (sT1, sT1))
        e("s_add_i32 s%d, s%d, s%d" % (sInt, sInt, sT1))
        e("s_min_i32 s%d, s%d, %d" % (sInt, sInt, 2 * 16 * 256))
        e("s_max_i32 s%d, s%d, %d" % (sInt, sInt, -2 * 16 * 256))
    e("s_mul_i32 s%d, s%d, %d" % (sT0, sT0, int(K * 16)))
    e("s_ashr_i32 s%d, s%d, 16" % (sT0, sT0))
    e("s_min_i32 s%d, s%d, %d" % (sT0, sT0, int(clampw * 16)))
    e("s_max_i32 s%d, s%d, %d" % (sT0, sT0, -int(clampw * 16)))
    e("s_add_i32 s%d, s%d, s%d" % (sT0, sT0, sWin0))
    if ki:
        e("s_ashr_i32 s%d, s%d, 8" % (sT1, sInt))
        e("s_add_i32 s%d, s%d, s%d" % (sT0, sT0, sT1))
    e("s_max_i32 s%d, s%d, 0" % (sT0, sT0))
    e("v_mov_b32 v%d, s%d" % (vT1, sT0))
    e("s_mov_b64 exec, 1")
    e("ds_write_b32 v%d, v%d offset:%d" % (vFa, vT1, AB + 4 - FB))
    e("L_fbpost:")
    e("s_mov_b64 exec, 1")
    if useF:
        e("s_waitcnt lgkmcnt(0)")
        e("v_readfirstlane_b32 s%d, v%d" % (sF, vPoll))
        e("s_nop 0")
        e("s_max_i32 s%d, s%d, 0" % (sT0, sF))
        e("s_mul_i32 s%d, s%d, s%d" % (sSent, sT0, sU))
    else:
        e("s_mul_i32 s%d, s%d, s%d" % (sSent, sP, sU))
    e("s_add_u32 s%d, s%d, 128" % (sT0, sSent))
    e("s_lshr_b32 s%d, s%d, 8" % (sT0, sT0))
    e("v_mov_b32 v%d, s%d" % (vT0, sT0))
    e("buffer_store_byte v%d, v%d, %s, s%d offen" % (vT0, vZ, sr(sDsrd, 4), sOo))
    e("buffer_load_dwordx4 %s, v%d, %s, 0 offen sc1" % (vr(vPe, 4), vZ, sr(sDsrd, 4)))
    e("buffer_load_dwordx4 %s, v%d, %s, 0 offen offset:16 sc1" % (vr(vPe + 4, 4), vZ, sr(sDsrd, 4)))
    e("s_cmp_lg_u32 s%d, 4" % sP)
    e("s_cbranch_scc1 L_fbnl")
    e("buffer_load_dwordx2 %s, v%d, %s, 0 offen offset:128 sc1" % (vr(vSk, 2), vZ, sr(sDsrd, 4)))
    if xlead:
        e("buffer_load_dword v%d, v%d, %s, 0 offen offset:32 sc1" % (vLs, vZ, sr(sDsrd, 4)))
    e("L_fbnl:")
    e("s_mov_b64 exec, -1")
    e("s_branch L_fbret")

    e("L_cdone:")
    e("v_mov_b32 v%d, 1" % vT2)
    e("s_nop 4")
    for i in range(8):
        e("ds_write_b128 v%d, %s offset:%d" % (vL16, vr(vAcc + 4 * i, 4), 1024 * i))
    e("ds_write_b64 v%d, %s offset:8192" % (vL8, vr(vM, 2)))
    e("s_waitcnt lgkmcnt(0)")
    e("ds_write_b32 v%d, v%d offset:%d" % (vFa, vT2, XB - FB))
    e("s_barrier")
    if stamps:
        stamp_store(88)
    e("s_endpgm")
    e("L_last:")
    tile_code(True)
    if tdiag:
        e("s_memrealtime s[92:93]")
        e("s_waitcnt vmcnt(0) lgkmcnt(0)")
        e("v_mov_b32 v4, s90"); e("v_mov_b32 v5, s84"); e("v_mov_b32 v6, s86"); e("v_mov_b32 v7, s92")
        e("s_lshl_b32 s%d, s2, 4" % sT0)
        e("s_add_u32 s%d, s%d, %d" % (sT0, sT0, WS_STAMP + 16384 + 65536))
        e("v_mov_b32 v8, 0")
        e("s_mov_b64 exec, 1")
        e("buffer_store_dwordx4 v[4:7], v8, %s, s%d offen" % (sr(sWsrd, 4), sT0))
        e("s_mov_b64 exec, -1")
    if stamps:
        e("s_waitcnt vmcnt(0)")
        stamp_store(88)
    e("L_end:")
    e("s_endpgm")

    body_txt = "\n".join(("    " + x if not x.endswith(":") and not x.startswith(".") else x) for x in L)
    out = HEADER
    out += "; @launch grid=(256,1,1) block=(192,1,1) lds=%d\n" % LDS
    out += '.amdgcn_target "amdgcn-amd-amdhsa--gfx950"\n.text\n.globl %s_kernel\n.p2align 8\n.type %s_kernel,@function\n' % (NAME, NAME)
    out += body_txt + "\n"
    out += """.section .rodata,"a"
.p2align 6
.amdhsa_kernel %s_kernel
  .amdhsa_next_free_vgpr %d
  .amdhsa_next_free_sgpr 98
  .amdhsa_accum_offset %d
  .amdhsa_group_segment_fixed_size 0
  .amdhsa_kernarg_size 64
  .amdhsa_user_sgpr_count 2
  .amdhsa_user_sgpr_kernarg_segment_ptr 1
  .amdhsa_system_sgpr_workgroup_id_x 1
  .amdhsa_float_denorm_mode_32 3
.end_amdhsa_kernel
""" % (NAME, NV, NV)
    return out

if __name__ == "__main__":
    ap = argparse.ArgumentParser()
    ap.add_argument("-o", default="cdna_kernels/%s.s" % NAME)
    for name, typ in (("N", float), ("gamma", float), ("gneg", float), ("n1", int), ("lam", float), ("fmul", float), ("fmul2", float),
                      ("fmul31", float), ("nfmin", int), ("hw", float), ("c1b", float), ("K", float), ("lag", float), ("clampw", float),
                      ("pstop", int), ("ks", float), ("toff", float), ("gstep", float), ("xlead", int), ("useF", int), ("ki", float), ("midbar", int)):
        ap.add_argument("--" + name, type=typ, default=None)
    for name in ("stamps", "trace", "tdiag", "cntslow"):
        ap.add_argument("--" + name, action="store_true")
    a = vars(ap.parse_args())
    o = a.pop("o")
    kw = {k: v for k, v in a.items() if v is not None}
    open(o, "w").write(gen(**kw))
```
